```python
import torch

def _softmax(x, axis=-1):
    return torch.softmax(x, dim=axis)
def _gelu(x):
    return torch.nn.functional.gelu(x, approximate="tanh")
def _silu(x):
    return torch.nn.functional.silu(x)
def _sigmoid(x):
    return torch.sigmoid(x)
def _layernorm(x, axis=-1, eps=1e-5):
    m = x.mean(dim=axis, keepdim=True)
    v = x.var(dim=axis, keepdim=True, unbiased=False)
    return (x - m) / torch.sqrt(v + eps)
def _scatter_add(tgt, idx, src, axis=0):
    return tgt.clone().index_add_(axis, idx, src)
def _segment_sum(src, seg, n):
    out = torch.zeros((n,) + src.shape[1:], dtype=src.dtype)
    return out.index_add_(0, seg, src)
def _pad(x, pw):
    flat = tuple(v for pair in reversed(pw) for v in pair)
    return torch.nn.functional.pad(x, flat)

kernel_name = 'parallel_sum__compressed_kv_cla__mixer_channel_mlp__prompt'

def setup_inputs():

    _w = (lambda a: (lambda t: t.to(torch.bfloat16) if t.is_floating_point() else t)(torch.as_tensor(a)))
    def _A_setup():
        B, H, Sq, Sk, D, M = 1, 32, 2048, 2048, 128, 640
        Dc = 4 * D
        return {
            "x": _w((lambda *s: torch.randn(*s, dtype=torch.bfloat16) * 0.05)(B, Sq, M)),
            "c_kv": _w((lambda *s: torch.randn(*s, dtype=torch.bfloat16) * 0.4)(B, Sk, Dc)),
            "w_q": _w((lambda *s: torch.randn(*s, dtype=torch.bfloat16) * 3.2)(M, H, D) * (M ** -0.5)),
            "w_uk": _w((lambda *s: torch.randn(*s, dtype=torch.bfloat16) * 3.2)(Dc, H, D) * (Dc ** -0.5)),
            "w_uv": _w((lambda *s: torch.randn(*s, dtype=torch.bfloat16) * 0.4)(Dc, H, D) * (Dc ** -0.5)),
            "w_o": _w((lambda *s: torch.randn(*s, dtype=torch.bfloat16) * 0.4)(H, D, M) * ((H * D) ** -0.5)),
        }
    _A_in = _A_setup()

    def _B_setup():
        B, S, D, F = 1, 2048, 640, 1728
        return {
            "x": _w((lambda *s: torch.randn(*s, dtype=torch.bfloat16) * 0.05)(B, S, D)),
            "w1": _w((lambda *s: torch.randn(*s, dtype=torch.bfloat16) * 0.8)(D, F) * (D ** -0.5)),
            "b1": _w((lambda *s: torch.randn(*s, dtype=torch.bfloat16) * 0.4)(F)),
            "w2": _w((lambda *s: torch.randn(*s, dtype=torch.bfloat16) * 0.05)(F, D) * (F ** -0.5)),
            "b2": _w((lambda *s: torch.randn(*s, dtype=torch.bfloat16) * 0.05)(D)),
        }
    _B_in = _B_setup()

    return {
        "A_x": _A_in["x"],
        "A_c_kv": _A_in["c_kv"],
        "A_w_q": _A_in["w_q"],
        "A_w_uk": _A_in["w_uk"],
        "A_w_uv": _A_in["w_uv"],
        "A_w_o": _A_in["w_o"],
        "B_x": _B_in["x"],
        "B_w1": _B_in["w1"],
        "B_b1": _B_in["b1"],
        "B_w2": _B_in["w2"],
        "B_b2": _B_in["b2"],
    }

def reference(A_x, A_c_kv, A_w_q, A_w_uk, A_w_uv, A_w_o, B_x, B_w1, B_b1, B_w2, B_b2):
    def _A_ref(x, c_kv, w_q, w_uk, w_uv, w_o):
        B, Sq, M = x.shape[0], x.shape[1], x.shape[2]
        Sk = c_kv.shape[1]
        H, D = w_q.shape[1], w_q.shape[2]
        q = torch.einsum("bqm,mhd->bhqd", x, w_q)
        k = torch.einsum("bkc,chd->bhkd", c_kv, w_uk)
        v = torch.einsum("bkc,chd->bhkd", c_kv, w_uv)
        scores = torch.einsum("bhqd,bhkd->bhqk", q, k) * (D ** -0.5)
        off = Sk - Sq
        qi = torch.arange(Sq)[:, None]
        kj = torch.arange(Sk)[None, :]
        cmask = kj <= (qi + off)
        scores = torch.where(cmask[None, None], scores, -1e9)
        p = _softmax(scores, axis=-1)
        ctx = torch.einsum("bhqk,bhkd->bhqd", p, v)
        return torch.einsum("bhqd,hdm->bqm", ctx, w_o)

    def _B_ref(x, w1, b1, w2, b2):
        y = _layernorm(x, axis=-1)
        h = _gelu(torch.einsum("bsd,df->bsf", y, w1) + b1)
        return torch.einsum("bsf,fd->bsd", h, w2) + b2

    x = A_x
    xn = _layernorm(x, axis=-1)
    return x + _A_ref(xn, A_c_kv, A_w_q, A_w_uk, A_w_uv, A_w_o) + _B_ref(xn, B_w1, B_b1, B_w2, B_b2)
```

```python
import re

TRANS = ("v_exp_f32", "v_log_f32", "v_rcp_f32", "v_rsq_f32", "v_sqrt_f32", "v_sin_f32", "v_cos_f32")
REG_RE = re.compile(r"^(-)?(abs\()?\|?([vas])(\d+|\[(\d+):(\d+)\])\|?\)?$")


def regs_of(tok):
    tok = tok.strip()
    if tok in ("vcc", "exec"):
        return [(tok, 0), (tok, 1)]
    if tok in ("vcc_lo", "exec_lo"):
        return [(tok[:-3], 0)]
    if tok in ("vcc_hi", "exec_hi"):
        return [(tok[:-3], 1)]
    if tok == "m0":
        return [("m0", 0)]
    m = REG_RE.match(tok)
    if not m:
        return []
    t = m.group(3)
    if m.group(5) is not None:
        return [(t, i) for i in range(int(m.group(5)), int(m.group(6)) + 1)]
    return [(t, int(m.group(4)))]


class Ins:
    __slots__ = ("text", "op", "ops", "mods", "w", "r", "cls", "passes", "srcc", "srcab", "states", "data", "note")

    def __init__(self, text):
        self.text = text
        t = text.split(";")[0].strip()
        self.w = []
        self.r = []
        self.passes = 0
        self.srcc = []
        self.srcab = []
        self.data = []
        self.states = 1
        self.note = None
        if not t or t.endswith(":") or t.startswith("."):
            self.op = ""
            self.ops = []
            self.mods = []
            self.cls = "label" if t.endswith(":") else "none"
            self.states = 0
            return
        parts = t.split(None, 1)
        op = parts[0]
        self.op = op
        rest = parts[1] if len(parts) > 1 else ""
        ops, cur, depth = [], "", 0
        for ch in rest:
            if ch in "[(":
                depth += 1
            if ch in "])":
                depth -= 1
            if ch == "," and depth == 0:
                ops.append(cur.strip())
                cur = ""
            else:
                cur += ch
        last = cur.strip().split()
        mods = []
        if last:
            ops.append(last[0])
            mods = last[1:]
        self.ops = ops
        self.mods = mods
        R = [regs_of(o) for o in ops]
        flat = lambda L: [x for l in L for x in l]
        if op.startswith("v_mfma"):
            self.cls = "mfma"
            self.passes = 8 if "32x32x16" in op else 4
            self.w = R[0]
            self.srcab = R[1] + R[2]
            self.srcc = R[3]
            self.r = self.srcab + self.srcc
        elif op.startswith("ds_"):
            self.cls = "ds"
            if op.startswith("ds_write"):
                self.r = flat(R)
                self.data = flat(R[1:])
            else:
                self.w = R[0]
                self.r = flat(R[1:])
        elif op.startswith("buffer_") or op.startswith("global_"):
            self.cls = "vmem"
            if op in ("buffer_wbl2", "buffer_inv"):
                pass
            elif "lds" in mods:
                self.r = flat(R) + [("m0", 0)]
                self.cls = "dma"
            elif "_store" in op or "_atomic" in op:
                self.r = flat(R)
                if op.startswith("buffer_"):
                    self.data = R[0]
                else:
                    self.data = R[1]
                if "_atomic" in op and "sc0" in mods:
                    self.w = R[0]
            else:
                self.w = R[0]
                self.r = flat(R[1:])
        elif op.startswith("s_load") or op in ("s_memtime", "s_memrealtime"):
            self.cls = "smem"
            self.w = R[0]
            self.r = flat(R[1:])
        elif op == "s_waitcnt":
            self.cls = "wait"
        elif op == "s_nop":
            self.cls = "nop"
            self.states = int(ops[0], 0) + 1
        elif op.startswith("s_"):
            self.cls = "salu"
            if op.startswith("s_cmp") or op.startswith("s_bitcmp"):
                self.r = flat(R)
                self.w = [("scc", 0)]
            elif op.startswith("s_cbranch") or op in ("s_branch", "s_barrier", "s_endpgm", "s_setprio", "s_sleep"):
                self.cls = "ctl"
                if "vcc" in op:
                    self.r = [("vcc", 0), ("vcc", 1)]
            else:
                self.w = list(R[0])
                self.r = flat(R[1:])
                if "saveexec" in op:
                    self.w += [("exec", 0), ("exec", 1)]
        elif op.startswith("v_"):
            base = op.replace("_e32", "").replace("_e64", "").replace("_dpp", "").replace("_sdwa", "")
            self.cls = "trans" if base in TRANS else "valu"
            if base.startswith("v_permlane") and "swap" in base:
                self.w = R[0] + R[1]
                self.r = R[0] + R[1]
                self.note = "permlane"
            elif base.startswith("v_cmp"):
                self.w = list(R[0])
                self.r = flat(R[1:])
                if base.startswith("v_cmpx"):
                    self.w += [("exec", 0), ("exec", 1)]
            elif base in ("v_add_co_u32", "v_sub_co_u32", "v_addc_co_u32", "v_subb_co_u32"):
                self.w = R[0] + R[1]
                self.r = flat(R[2:])
            else:
                self.w = R[0]
                self.r = flat(R[1:])
                if base in ("v_fmac_f32", "v_pk_fmac_f16", "v_dot2c_f32_bf16", "v_writelane_b32"):
                    self.r += R[0]
                if base in ("v_readfirstlane_b32", "v_readlane_b32"):
                    self.note = "readlane"
            if any(m.startswith(("row_", "quad_perm", "wave_")) for m in mods):
                self.note = "dpp"
            if "sdwa" in op and any(m.startswith("dst_sel") and "DWORD" not in m for m in mods):
                self.note = "dstsel"
        else:
            raise ValueError("unknown instruction: " + text)
        if ";" in text:
            for tok in text.split(";", 1)[1].split():
                if tok.startswith("W:"):
                    self.w = list(self.w) + [("lds", tok[2:])]
                elif tok.startswith("R:"):
                    self.r = list(self.r) + [("lds", tok[2:])]

    def is_valu(self):
        return self.cls in ("valu", "trans")


def need_states(p, c):
    n = 0
    pw, cr, cw = set(p.w), set(c.r), set(c.w)
    raw = pw & cr
    waw = pw & cw
    vraw = {x for x in raw if x[0] in "va"}
    sraw = {x for x in raw if x[0] in ("s", "vcc")}
    if p.is_valu():
        if c.cls == "mfma" and vraw:
            n = max(n, 2)
        if p.cls == "trans" and c.is_valu() and c.cls != "trans" and vraw:
            n = max(n, 1)
        if p.cls == "trans" and c.cls == "trans" and vraw:
            n = max(n, 1)
        if sraw and c.is_valu():
            n = max(n, 4 if c.note == "readlane" else 2)
        if sraw and c.cls in ("vmem", "dma"):
            n = max(n, 5)
        if sraw and c.cls in ("salu", "ctl", "smem"):
            n = max(n, 1)
        if vraw and c.note == "readlane":
            n = max(n, 1)
        if vraw and c.note in ("dpp", "permlane"):
            n = max(n, 2)
        if p.note == "dstsel" and (vraw or waw) and c.is_valu():
            n = max(n, 1)
        if ("exec", 0) in pw:
            if c.cls == "mfma" or c.note in ("readlane", "permlane"):
                n = max(n, 4)
            if c.note == "dpp":
                n = max(n, 5)
    if p.cls == "mfma":
        big = p.passes + 4
        if c.cls == "mfma":
            if pw & set(c.srcab):
                n = max(n, big)
            ov = pw & set(c.srcc)
            if ov and not (list(p.w) == list(c.srcc) and p.passes == c.passes):
                n = max(n, p.passes + 2)
            if waw and p.passes != c.passes:
                n = max(n, big)
        elif c.is_valu():
            if raw or waw:
                n = max(n, big)
            if set(p.srcc) & cw:
                n = max(n, p.passes - 1)
        elif c.cls in ("vmem", "ds", "dma"):
            if raw or waw:
                n = max(n, big)
            if set(p.srcc) & cw:
                n = max(n, p.passes - 1)
    if p.cls == "salu" and ("m0", 0) in pw and c.cls == "dma":
        n = max(n, 1)
    if p.cls == "vmem" and len(p.data) >= 3 and (set(p.data) & cw):
        n = max(n, 2 if c.is_valu() else 1)
    if p.cls == "ds" and len(p.data) >= 3 and (set(p.data) & cw) and c.is_valu():
        n = max(n, 1)
    return n


MAXD = 14


class Block:
    def __init__(self, name=""):
        self.name = name
        self.ins = []

    def __call__(self, text):
        for l in text.split("\n"):
            l = l.strip()
            if l:
                self.ins.append(Ins(l))
        return self

    def extend(self, other):
        self.ins += other.ins

    def text(self):
        out = []
        for i in self.ins:
            out.append(i.text if i.cls in ("label",) else "    " + i.text)
        return "\n".join(out)


def fix_hazards(block, prev=None):
    tails = [[]]
    if prev:
        tails = [[i for i in p.ins if i.states][-MAXD:] for p in prev]
    out = []
    nins = 0
    for c in block.ins:
        if c.states == 0:
            out.append(c)
            continue
        need = 0
        for tail in tails:
            hist = tail + [i for i in out[-3 * MAXD:] if i.states][-MAXD:] if nins < MAXD else [i for i in out[-3 * MAXD:] if i.states][-MAXD:]
            d = 0
            for p in reversed(hist):
                n = need_states(p, c)
                if n > d:
                    need = max(need, n - d)
                d += p.states
                if d >= MAXD:
                    break
        while need > 0:
            k = min(need, 16)
            out.append(Ins(f"s_nop {k - 1}"))
            nins += 1
            need -= k
        out.append(c)
        nins += 1
    block.ins = out
    return block


def check_trace(blocks, name="trace", verbose=True):
    seq = [i for b in blocks for i in b.ins if i.states]
    errs = 0
    lg = []
    vm = []
    NOSCC = ("s_mov_b32", "s_mov_b64", "s_cselect_b32", "s_cselect_b64", "s_mul_i32", "s_mul_hi_u32", "s_movk_i32", "s_getreg_b32")
    lastscc = None
    for idx, c in enumerate(seq):
        if c.op.startswith("s_cselect") or c.op.startswith("s_cbranch_scc"):
            ok = lastscc is not None and (lastscc.op.startswith("s_cmp") or (c.op.startswith("s_cbranch") and lastscc is seq[idx - 1]))
            if not ok:
                errs += 1
                print(f"[{name}] SCC suspicious: '{lastscc.text if lastscc else None}' -> '{c.text}'")
        if c.cls == "salu" and c.op not in NOSCC:
            lastscc = c
        d = 0
        for j in range(idx - 1, max(-1, idx - MAXD - 1), -1):
            p = seq[j]
            n = need_states(p, c)
            if n > d:
                errs += 1
                if verbose:
                    print(f"[{name}] HAZARD need {n} have {d}: '{p.text}' -> '{c.text}'")
            d += p.states
            if d >= MAXD:
                break
        if c.cls == "wait":
            m = re.search(r"lgkmcnt\((\d+)\)", c.text)
            if m:
                n = int(m.group(1))
                if any(s for _, s in lg) and n > 0:
                    pass
                else:
                    lg = lg[len(lg) - n:] if n > 0 and len(lg) > n else ([] if n == 0 else lg)
            m = re.search(r"vmcnt\((\d+)\)", c.text)
            if m:
                n = int(m.group(1))
                vm = vm[len(vm) - n:] if n > 0 and len(vm) > n else ([] if n == 0 else vm)
            continue
        touch = set(c.r) | set(x for x in c.w if x[0] != "lds")
        for pend, nm in ((lg, "lgkm"), (vm, "vm")):
            for regs, _ in pend:
                if regs & touch:
                    errs += 1
                    if verbose:
                        print(f"[{name}] MISSING {nm} wait before '{c.text}' ({sorted(regs & touch)[:2]})")
                    break
        if c.cls == "ds":
            lg.append((set(c.w), False))
            if len(lg) > 15 and False:
                print(f"[{name}] warning lgkm overflow at {c.text}")
        elif c.cls == "smem":
            lg.append((set(c.w), True))
            if len(c.w) > 1:
                lg.append((set(), True))
        elif c.cls in ("vmem", "dma"):
            vm.append((set(c.w), False))
    return errs


def auto_wait(block, lg_in=None, vm_in=None):
    lg = [set(x) for x in (lg_in or [])]
    vm = [set(x) for x in (vm_in or [])]
    smem_pending = False
    smem_regs = set()
    out = []
    for c in block.ins:
        if c.states == 0:
            out.append(c)
            continue
        if c.cls == "wait":
            m = re.search(r"lgkmcnt\((\d+)\)", c.text)
            if m:
                n = int(m.group(1))
                if n == 0:
                    lg = []
                    smem_pending = False
                    smem_regs = set()
                elif not smem_pending and len(lg) > n:
                    lg = lg[len(lg) - n:]
            m = re.search(r"vmcnt\((\d+)\)", c.text)
            if m:
                n = int(m.group(1))
                vm = [] if n == 0 else (vm[len(vm) - n:] if len(vm) > n else vm)
            out.append(c)
            continue
        touch = set(c.r) | set(x for x in c.w if x[0] != "lds")
        wl = wv = None
        if smem_regs & touch:
            wl = 0
        for i, regs in enumerate(lg):
            if regs & touch:
                n = len(lg) - 1 - i
                if smem_pending:
                    n = 0
                n = min(n, 14)
                wl = n if wl is None else min(wl, n)
        for i, regs in enumerate(vm):
            if regs & touch:
                n = min(len(vm) - 1 - i, 62)
                wv = n if wv is None else min(wv, n)
        if wl is not None or wv is not None:
            s = "s_waitcnt"
            if wv is not None:
                s += f" vmcnt({wv})"
                vm = [] if wv == 0 else vm[len(vm) - wv:]
            if wl is not None:
                s += f" lgkmcnt({wl})"
                lg = [] if wl == 0 else lg[len(lg) - wl:]
                if wl == 0:
                    smem_pending = False
                    smem_regs = set()
            out.append(Ins(s))
        if c.cls == "ds":
            lg.append(set(c.w))
        elif c.cls == "smem":
            smem_pending = True
            smem_regs |= set(c.w)
        elif c.cls in ("vmem", "dma"):
            vm.append(set(c.w))
        out.append(c)
    block.ins = out
    return lg, vm


def interleave(mains, fillers):
    b = Block()
    for t in fillers.get(-1, []):
        b(t)
    for i, m in enumerate(mains):
        b(m)
        for t in fillers.get(i, []):
            b(t)
    return b


def kernel_header(name):
    return f".globl {name}\n.p2align 8\n.type {name},@function\n{name}:"


def kernel_desc(name, nvgpr, accum, nsgpr=102):
    return (
        f".p2align 6\n.amdhsa_kernel {name}\n"
        f"  .amdhsa_next_free_vgpr {nvgpr}\n  .amdhsa_next_free_sgpr {nsgpr}\n  .amdhsa_accum_offset {accum}\n"
        "  .amdhsa_group_segment_fixed_size 0\n  .amdhsa_kernarg_size 112\n  .amdhsa_user_sgpr_count 2\n"
        "  .amdhsa_user_sgpr_kernarg_segment_ptr 1\n  .amdhsa_system_sgpr_workgroup_id_x 1\n"
        "  .amdhsa_float_denorm_mode_32 3\n"
        ".end_amdhsa_kernel"
    )


class Sched:
    def __init__(self, mains, period):
        self.mains = mains
        self.period = period
        self.streams = []
        self.pre = []

    def add(self, items, maxper=99):
        self.streams.append([list(items), maxper])

    def build(self, slack=0):
        b = Block()
        for t in self.pre:
            b(t)
        n = len(self.mains)
        for g in range(n):
            b(self.mains[g])
            vec, non = [], []
            order = []

            def cost(vec, non):
                nt = sum(1 for v in vec if v.cls == "trans")
                return 8 + 8 * nt + 4 * (len(vec) - nt) + 4 * max(0, len(non) - 1 - nt)
            for st in self.streams:
                items, maxper = st
                k = 0
                while items and (g == n - 1 or (items[0][0] <= g and k < maxper)):
                    grp = [Ins(l.strip()) for l in items[0][1].split("\n") if l.strip()]
                    v2 = vec + [i for i in grp if i.is_valu()]
                    n2 = non + [i for i in grp if not i.is_valu()]
                    forced = len(items[0]) > 2 and items[0][2]
                    if g < n - 1 and not forced and cost(v2, n2) > self.period - slack and (vec or non):
                        break
                    vec, non = v2, n2
                    order.append(grp)
                    items.pop(0)
                    k += 1
            multi = [x for x in order if len(x) > 1]
            sn = [x[0] for x in order if len(x) == 1 and not x[0].is_valu()]
            sv = [x[0] for x in order if len(x) == 1 and x[0].is_valu()]
            out = []
            for x in multi:
                out += x
            if sn and not multi:
                out.append(sn.pop(0))
            for v in sv:
                out.append(v)
                if v.cls == "trans" and sn:
                    out.append(sn.pop(0))
            out += sn
            orig = [i for x in order for i in x]
            pos = {id(i): k for k, i in enumerate(out)}
            ok = True
            for a in range(len(orig)):
                for c in range(a + 1, len(orig)):
                    x, y = orig[a], orig[c]
                    if pos[id(x)] > pos[id(y)]:
                        dep = (set(x.w) & (set(y.r) | set(y.w))) or (set(x.r) & set(y.w))
                        sync = x.cls in ("wait", "ctl") or y.cls in ("wait", "ctl")
                        mem = ("ds", "vmem", "dma")
                        scc = x.cls == "salu" and y.cls == "salu"
                        if dep or scc or (sync and (x.cls in mem or y.cls in mem or (x.cls in ("wait", "ctl") and y.cls in ("wait", "ctl")))):
                            ok = False
            b.ins += out if ok else orig
        for st in self.streams:
            assert not st[0], ("unscheduled", st[0][:3])
        return b


def apply_stamps(blocks, name, sW, on, ka_dbg=96, base=72, nwg=16, stride=1):
    n = 0
    for b in blocks:
        out = []
        for i in b.ins:
            if i.text.strip() == "; stamp":
                if on:
                    if n == 0:
                        out.append(Ins(f"s_memrealtime s[98:99]"))
                    out.append(Ins(f"s_memtime s[{base + 2 * n}:{base + 2 * n + 1}]"))
                    n += 1
                continue
            if on and i.text.strip() == f"{name}_done:":
                d = Block()
                d(f"""s_waitcnt vmcnt(0)
                s_memtime s[{base + 2 * n}:{base + 2 * n + 1}]
                s_memrealtime s[100:101]
                s_load_dwordx2 s[4:5], s[0:1], {ka_dbg}
                s_waitcnt lgkmcnt(0)
                s_mov_b32 s6, 4096
                s_mov_b32 s7, 0x20000
                s_cmp_lg_u32 s{sW}, 0
                s_cbranch_scc1 {name}_done
                s_and_b32 s8, s2, {stride - 1}
                s_cmp_lg_u32 s8, 0
                s_cbranch_scc1 {name}_done
                s_lshr_b32 s8, s2, {stride.bit_length() - 1}
                s_cmp_ge_u32 s8, {nwg}
                s_cbranch_scc1 {name}_done
                s_lshl_b32 s8, s8, 6
                v_mov_b32 v1, 0
                s_sub_u32 s9, s100, s98
                v_mov_b32 v2, s9
                buffer_store_dword v2, v1, s[4:7], s8 offen""")
                for k in range(1, n + 1):
                    d(f"s_sub_u32 s9, s{base + 2 * k}, s{base}\nv_mov_b32 v2, s9\nbuffer_store_dword v2, v1, s[4:7], s8 offen offset:{4 * k}")
                out += d.ins
            out.append(i)
        b.ins = out
    assert base + 2 * n + 1 < 98
```

```python
from asmlib import *
from layout import *

COST = {"trans": 8, "valu": 4, "ds": 4, "dma": 8, "vmem": 8, "salu": 4, "wait": 4, "ctl": 4, "nop": 4}


def cost_of(t):
    return sum(COST.get(Ins(l).cls, 4) for l in t.split("\n") if l.strip())


def gap_order(vec, non):
    out = []
    non = list(non)
    if non:
        out.append(non.pop(0))
    for v in vec:
        out.append(v)
        if Ins(v).cls == "trans" and non:
            out.append(non.pop(0))
    out += non
    return out


def gap_cost(vec, non):
    nt = sum(1 for v in vec if Ins(v).cls == "trans")
    shadows = 1 + nt
    return 8 + 8 * nt + 4 * (len(vec) - nt) + 4 * max(0, len(non) - shadows)


def distribute(n_gaps, fixed, stream, first=0, last=None, extra_wait=None):
    last = n_gaps - 1 if last is None else last
    out = {}
    fx_v, fx_n, raw = {}, {}, {}
    for g, v in fixed.items():
        lines = [l.strip() for t in v for l in t.split("\n") if l.strip()]
        raw[g] = lines
        fx_v[g] = [l for l in lines if Ins(l).is_valu()]
        fx_n[g] = [l for l in lines if not Ins(l).is_valu()]
    stream = [l.strip() for t in stream for l in t.split("\n") if l.strip()]
    for cap in range(12, 200, 2):
        i = 0
        asg = {}
        for g in range(first, last + 1):
            lst = []
            non = fx_n.get(g, []) + (["s_nop 0"] if (g % 2 == 1) else [])
            while i < len(stream) and gap_cost(lst + [stream[i]] + fx_v.get(g, []), non) <= cap:
                lst.append(stream[i])
                i += 1
            asg[g] = lst
        if i == len(stream):
            break
    for g in set(list(raw.keys()) + list(asg.keys())):
        if g in asg and not fx_v.get(g):
            out[g] = gap_order(asg[g], fx_n.get(g, []))
        else:
            out[g] = raw.get(g, []) + asg.get(g, [])
    return out


def gen_attn(name="attn_kernel", shape=32, stamps=False):
    assert shape == 32
    O = lambda db, qt: 16 * (db * 2 + qt)
    Q = lambda qt, s: 128 + 4 * (qt * 8 + s)
    FR = lambda f: 192 + 4 * (f % 8)
    Sb = lambda b, qt: 32 + 32 * b + 16 * qt
    Pb = lambda b, qt, ks: 96 + 16 * b + 8 * qt + 4 * ks
    NM = lambda qt: 128 + 16 * qt
    XR = 160
    vL16, vKb, vVb0, vVb1, vKa, vVa0, vVa1 = 1, 2, 3, 4, 5, 6, 7
    vDq = [8, 9]
    vNEG, vCo = 10, 11
    vM = [12, 14]
    vLs = [13, 15]
    vT = 16
    ar = lambda b, n=4: f"a[{b}:{b + n - 1}]"
    vr = lambda b, n=4: f"v[{b}:{b + n - 1}]"
    SRD = "s[4:7]"
    sKbase, sVbase, sKn, sKl, sVn, sVl, sKw, sVw = 8, 9, 10, 11, 12, 13, 14, 15
    sT, sT2, sCnt, sBlk, sW, sQh, sKh, sQrow = 16, 17, 18, 19, 20, 21, 22, 23
    sKr, sVr, sQo, sTmp, sH, sCb, sOOB, sTmp2 = 24, 25, 26, 27, 28, 29, 30, 31
    sKnx, sVnx = 32, 33
    sRw, sRp = 34, 35
    MF = "v_mfma_f32_32x32x16_bf16"

    def dma_K():
        L = [f"s_mov_b32 m0, s{sKw}\ns_add_u32 s{sKw}, s{sKw}, 0x4000"]
        for i in range(4):
            L.append(f"buffer_load_dwordx4 v{vL16}, {SRD}, s{sKn} offen offset:{i * 1024} lds")
        L.append(f"s_and_b32 s{sKw}, s{sKw}, 0xffff\ns_add_u32 s{sKn}, s{sKn}, 0x4000")
        L.append(f"s_sub_u32 s{sKl}, s{sKl}, 1\ns_cmp_eq_u32 s{sKl}, 0")
        L.append(f"s_cselect_b32 s{sKn}, s{sKnx}, s{sKn}\ns_cselect_b32 s{sKl}, s{sT2}, s{sKl}\ns_cselect_b32 s{sKnx}, s{sOOB}, s{sKnx}")
        return L

    def dma_V():
        L = [f"s_mov_b32 m0, s{sVw}\ns_add_u32 s{sVw}, s{sVw}, 0x4000"]
        for i in range(4):
            L.append(f"buffer_load_dwordx4 v{vL16}, {SRD}, s{sVn} offen offset:{i * 1024} lds")
        L.append(f"s_and_b32 s{sVw}, s{sVw}, 0xffff\ns_or_b32 s{sVw}, s{sVw}, 0x10000\ns_add_u32 s{sVn}, s{sVn}, 0x4000")
        L.append(f"s_sub_u32 s{sVl}, s{sVl}, 1\ns_cmp_eq_u32 s{sVl}, 0")
        L.append(f"s_cselect_b32 s{sVn}, s{sVnx}, s{sVn}\ns_cselect_b32 s{sVl}, s{sT2}, s{sVl}\ns_cselect_b32 s{sVnx}, s{sOOB}, s{sVnx}")
        return L

    def q_loads():
        L = []
        for grp in range(4):
            pre = f"s_add_u32 s{sTmp}, s{sQo}, {grp * 4096}\n"
            for i in range(4):
                f = grp * 4 + i
                L.append(pre + f"buffer_load_dwordx4 {ar(128 + 4 * f)}, v{vL16}, {SRD}, s{sTmp} offen offset:{i * 1024}")
                pre = ""
        return L

    def rdK(s, slot):
        return f"ds_read_b128 {ar(FR(slot))}, v{vKa} offset:{s * 1024}"

    def rdV(f, slot):
        ks, db = f // 4, f % 4
        va = vVa0 if db < 2 else vVa1
        return f"ds_read_b128 {ar(FR(slot))}, v{va} offset:{(db % 2) * 2048 + ks * 1024}"

    advK = f"s_add_u32 s{sKr}, s{sKr}, 0x4000\ns_and_b32 s{sKr}, s{sKr}, 0xffff\nv_add_u32 v{vKa}, s{sKr}, v{vKb}"
    advV = (f"s_add_u32 s{sVr}, s{sVr}, 0x4000\ns_and_b32 s{sVr}, s{sVr}, 0xffff\n"
            f"v_add_u32 v{vVa0}, s{sVr}, v{vVb0}\nv_add_u32 v{vVa1}, s{sVr}, v{vVb1}")

    def cr(r):
        return 8 * (r // 4) + r % 4

    def mask_ops(b, dq):
        L = []
        for c in range(2):
            for qt in range(2):
                for half in range(2):
                    rs = [8 * c + 4 * half + j for j in range(4)]
                    for j, r in enumerate(rs):
                        L.append(f"v_cmp_gt_i32 s[{40 + 2 * j}:{41 + 2 * j}], {cr(r)}, v{dq[qt]}")
                    for j, r in enumerate(rs):
                        x = Sb(b, qt) + r
                        L.append(f"v_cndmask_b32 v{x}, v{x}, v{vNEG}, s[{40 + 2 * j}:{41 + 2 * j}]")
        return L

    def softmax_ops(b, masked_dq=None):
        elems = [(qt, 8 * c + j) for c in range(2) for qt in range(2) for j in range(8)]
        mk = mask_ops(b, masked_dq) if masked_dq else None
        L = []
        for i, (qt, r) in enumerate(elems + [(None, None)]):
            if qt is not None:
                if mk and i % 4 == 0:
                    L += mk[(i // 4) * 8:(i // 4) * 8 + 8]
                x = Sb(b, qt) + r
                L.append(f"v_exp_f32 v{x}, v{x}")
            if i >= 1:
                pq, pr = elems[i - 1]
                x = Sb(b, pq) + pr
                L.append(f"v_add_f32 v{vLs[pq]}, v{vLs[pq]}, v{x}")
                if pr % 2 == 1:
                    d = Pb(b, pq, pr // 8) + (pr % 8) // 2
                    L.append(f"v_cvt_pk_bf16_f32 v{d}, v{x - 1}, v{x}")
        return L

    def pv_mfmas(b, slot0):
        L = []
        for f in range(8):
            ks, db = f // 4, f % 4
            for qt in range(2):
                L.append(f"{MF} {ar(O(db, qt), 16)}, {ar(FR(slot0 + f))}, {vr(Pb(b, qt, ks))}, {ar(O(db, qt), 16)}")
        return L

    def qk_mfmas(b, slot0, czero=False):
        L = []
        for s in range(8):
            for qt in range(2):
                c = vr(Sb(b, qt), 16) if s else ("0" if czero else vr(NM(qt), 16))
                L.append(f"{MF} {vr(Sb(b, qt), 16)}, {ar(FR(slot0 + s))}, {ar(Q(qt, s))}, {c}")
        return L

    def add(d, g, t):
        d.setdefault(g, []).append(t)

    def step(par, doPV, doQK, masked, doSM=True, label=None, qload=False):
        mains = []
        frs = []
        if doPV:
            mains += pv_mfmas(par ^ 1, 0)
            frs += [("V", f) for f in range(8)]
        if doQK:
            mains += qk_mfmas(par ^ 1, 0)
            frs += [("K", s) for s in range(8)]
        n = len(mains)
        nf = len(frs)
        fixed = {}
        if doSM:
            add(fixed, 0, "s_waitcnt vmcnt(12)\ns_barrier")
        for f in range(nf):
            g = 2 * f
            t = f + 4
            if t < nf:
                kind, idx = frs[t]
                if kind == "K" and idx == 0:
                    add(fixed, g - 1, advK)
                add(fixed, g, rdK(idx, t) if kind == "K" else rdV(idx, t))
            elif doSM:
                if t == nf:
                    add(fixed, g - 1, advV)
                add(fixed, g, rdV(t - nf, t))
        if doSM:
            dv, dk = dma_V(), dma_K()
            seq = dv + dk
            if qload:
                seq = seq + q_loads()
            gaps = [g for g in range(1, n, 2)] if not qload else list(range(1, n))
            per = max(1, -(-len(seq) // len(gaps)))
            gi = 0
            k = 0
            while k < len(seq):
                chunk = seq[k:k + per]
                k += per
                while "s_cmp" in chunk[-1]:
                    chunk.append(seq[k])
                    k += 1
                for t in chunk:
                    add(fixed, gaps[min(gi, len(gaps) - 1)], t)
                gi += 1
            dq = None
            pre = []
            if masked == "C":
                dq = vDq
            elif masked == "D":
                dq = [vT, vT + 1]
                pre = [f"v_subrev_u32 v{vT}, 64, v{vDq[0]}", f"v_subrev_u32 v{vT + 1}, 64, v{vDq[1]}"]
            fill = distribute(n, fixed, pre + softmax_ops(par, dq), first=2 if doPV else 1)
        else:
            fill = fixed
        b = interleave(mains, fill)
        if label:
            b.ins.insert(0, Ins(label + ":"))
        return b


    init = Block("init")
    init(f"""
    s_cmp_ge_u32 s2, 256
    s_cbranch_scc1 {name}_done
    s_load_dwordx2 s[4:5], s[0:1], {KA_WS}
    v_lshrrev_b32 v{vT}, 6, v0
    v_and_b32 v0, 63, v0
    v_readfirstlane_b32 s{sW}, v{vT}
    v_lshlrev_b32 v{vL16}, 4, v0
    s_mov_b32 s6, {WS_USED}
    s_mov_b32 s7, 0x20000
    s_mov_b32 s{sOOB}, 0x40000000
    s_and_b32 s{sQh}, s{sW}, 1
    s_lshr_b32 s{sKh}, s{sW}, 1
    s_and_b32 s{sH}, s2, 7
    s_lshl_b32 s{sH}, s{sH}, 2
    s_lshr_b32 s{sTmp}, s2, 6
    s_add_u32 s{sH}, s{sH}, s{sTmp}
    s_bfe_u32 s{sTmp}, s2, 0x30003
    s_add_u32 s{sT2}, s{sTmp}, 1
    s_lshl_b32 s{sT2}, s{sT2}, 1
    s_sub_u32 s{sT}, 34, s{sT2}
    s_sub_u32 s{sQrow}, 15, s{sTmp}
    s_lshl_b32 s{sQrow}, s{sQrow}, 7
    s_lshl_b32 s{sTmp}, s{sH}, 19
    s_lshl_b32 s{sTmp2}, s{sW}, 12
    s_add_u32 s{sKn}, s{sTmp}, s{sTmp2}
    s_add_u32 s{sVn}, s{sKn}, {VF_OFF}
    s_add_u32 s{sKn}, s{sKn}, {KF_OFF}
    s_mov_b32 s{sKnx}, s{sKn}
    s_mov_b32 s{sVnx}, s{sVn}
    s_mov_b32 s{sKl}, s{sT}
    s_mov_b32 s{sVl}, s{sT}
    s_mov_b32 s{sKw}, s{sTmp2}
    s_or_b32 s{sVw}, s{sTmp2}, 0x10000
    s_lshl_b32 s{sTmp2}, s{sQh}, 6
    s_add_u32 s{sTmp2}, s{sTmp2}, s{sQrow}
    s_lshl_b32 s{sTmp2}, s{sTmp2}, 8
    s_add_u32 s{sQo}, s{sTmp}, s{sTmp2}
    s_add_u32 s{sQo}, s{sQo}, {QF_OFF}
    s_mov_b32 s{sBlk}, 0
    s_mov_b32 s{sKr}, 0xc000
    s_mov_b32 s{sVr}, 0xc000
    s_waitcnt lgkmcnt(0)
    """)
    for t in dma_K() + q_loads() + dma_K() + dma_V() + dma_K() + dma_V() + dma_K():
        init(t)
    init(f"""
    s_lshl_b32 s{sTmp}, s{sKh}, 13
    v_add_u32 v{vKb}, s{sTmp}, v{vL16}
    s_mul_i32 s{sTmp2}, s{sKh}, 0x3000
    s_add_u32 s{sTmp2}, s{sTmp2}, 0x10000
    v_add_u32 v{vVb0}, s{sTmp2}, v{vL16}
    s_lshl_b32 s{sTmp2}, s{sKh}, 12
    s_add_u32 s{sTmp2}, s{sTmp2}, 0x11000
    v_add_u32 v{vVb1}, s{sTmp2}, v{vL16}
    v_mov_b32 v{vNEG}, 0xff800000
    v_and_b32 v{vT}, 31, v0
    v_lshrrev_b32 v{vT + 1}, 5, v0
    v_lshlrev_b32 v{vT + 2}, 2, v{vT + 1}
    v_sub_u32 v{vT + 2}, v{vT}, v{vT + 2}
    s_lshl_b32 s{sTmp}, s{sQh}, 6
    s_lshl_b32 s{sTmp2}, s{sKh}, 5
    s_sub_u32 s{sTmp}, s{sTmp}, s{sTmp2}
    v_add_u32 v{vDq[0]}, s{sTmp}, v{vT + 2}
    v_add_u32 v{vDq[1]}, 32, v{vDq[0]}
    """)
    init(f"""
    v_lshrrev_b32 v{vT + 2}, 4, v{vT}
    v_lshlrev_b32 v{vT + 2}, 17, v{vT + 2}
    v_and_b32 v{vT + 3}, 15, v0
    v_lshlrev_b32 v{vT + 3}, 4, v{vT + 3}
    v_lshl_add_u32 v{vCo}, v{vT + 1}, 8, v{vT + 3}
    v_add_u32 v{vCo}, v{vCo}, v{vT + 2}
    """)

    pro = Block("pro")
    pro(f"{name}_blk:")
    pro("s_waitcnt vmcnt(8)\ns_barrier")
    pro(advK)
    for s in range(8):
        pro(rdK(s, s))
    pro(f"v_add_u32 v{vT}, s{sQrow}, v{vDq[0]}\nv_add_u32 v{vT + 1}, s{sQrow}, v{vDq[1]}")
    pro(f"v_mov_b32 v{vLs[0]}, 0\nv_mov_b32 v{vLs[1]}, 0")
    pro(f"""
    s_lshl_b32 s{sTmp}, s{sQh}, 6
    s_add_u32 s{sTmp}, s{sTmp}, s{sQrow}
    s_lshl_b32 s{sCb}, s{sTmp}, 13
    s_lshl_b32 s{sTmp}, s{sH}, 12
    s_add_u32 s{sCb}, s{sCb}, s{sTmp}
    s_lshl_b32 s{sTmp}, s{sKh}, 11
    s_add_u32 s{sCb}, s{sCb}, s{sTmp}
    s_add_u32 s{sCb}, s{sCb}, {CF_OFF}
    """)
    zero = [f"v_accvgpr_write_b32 a{i}, 0" for i in range(128)]
    fixed = {}
    add(fixed, 7, advK)
    for s in range(4):
        add(fixed, 8 + 2 * s, rdK(s, s))
    pro.extend(interleave(qk_mfmas(0, 0, czero=True), distribute(16, fixed, zero)))
    for t in mask_ops(0, [vT, vT + 1]):
        pro(t)
    for qt in range(2):
        s0 = Sb(0, qt)
        m = vM[qt]
        pro(f"v_max3_f32 v{m}, v{s0}, v{s0 + 1}, v{s0 + 2}")
        pro(f"v_max3_f32 v{vT + 2 + qt}, v{s0 + 3}, v{s0 + 4}, v{s0 + 5}")
        for j in range(6, 14, 4):
            pro(f"v_max3_f32 v{m}, v{m}, v{s0 + j}, v{s0 + j + 1}")
            pro(f"v_max3_f32 v{vT + 2 + qt}, v{vT + 2 + qt}, v{s0 + j + 2}, v{s0 + j + 3}")
        pro(f"v_max3_f32 v{m}, v{m}, v{s0 + 14}, v{s0 + 15}")
        pro(f"v_max_f32 v{m}, v{m}, v{vT + 2 + qt}")
    for qt in range(2):
        pro(f"v_mov_b32 v{vT + 2 + qt}, v{vM[qt]}")
    for qt in range(2):
        pro(f"v_permlane32_swap_b32 v{vT + 2 + qt}, v{vM[qt]}")
    for qt in range(2):
        pro(f"v_max_f32 v{vM[qt]}, v{vM[qt]}, v{vT + 2 + qt}")
        pro(f"v_max_f32 v{vM[qt]}, 0xf149f2ca, v{vM[qt]}")
    for qt in range(2):
        for r in range(16):
            pro(f"v_sub_f32 v{NM(qt) + r}, 0, v{vM[qt]}")
    for qt in range(2):
        for r in range(16):
            pro(f"v_sub_f32 v{Sb(0, qt) + r}, v{Sb(0, qt) + r}, v{vM[qt]}")

    A0 = step(0, False, True, None)
    A0(f"s_lshr_b32 s{sCnt}, s{sT}, 1\ns_sub_u32 s{sCnt}, s{sCnt}, 1\ns_cmp_eq_u32 s{sCnt}, 0\ns_cbranch_scc1 {name}_D")
    B1 = step(1, True, True, None, label=f"{name}_loop")
    B1.ins.insert(0, Ins(".p2align 6"))
    B1(f"s_sub_u32 s{sCnt}, s{sCnt}, 1\ns_cmp_eq_u32 s{sCnt}, 0\ns_cbranch_scc1 {name}_C")
    B0 = step(0, True, True, None)
    B0(f"s_branch {name}_loop")
    C0 = step(0, True, True, "C", label=f"{name}_C")
    Dpre = Block()
    Dpre(f"{name}_D:")
    Dpre(f"""
    s_lshl_b32 s{sTmp}, s{sT2}, 6
    s_sub_u32 s{sTmp}, s{sTmp}, 128
    s_sub_u32 s{sTmp2}, s{sQrow}, s{sTmp}
    s_lshl_b32 s{sTmp2}, s{sTmp2}, 8
    s_sub_u32 s{sQo}, s{sQo}, s{sTmp2}
    s_mov_b32 s{sQrow}, s{sTmp}
    s_mov_b32 s{sT}, s{sT2}
    s_cmp_eq_u32 s{sBlk}, 0
    s_cselect_b32 s{sQo}, s{sQo}, s{sOOB}
    """)
    D1 = step(1, True, False, "D", qload=True)
    Dpre.extend(D1)
    D1 = Dpre

    E = Block("E")
    mains = pv_mfmas(1, 0)
    fixed = {}
    for f in range(4):
        add(fixed, 2 * f, rdV(f + 4, f + 4))
    vA = vT + 4
    add(fixed, -1, f"v_mov_b32 v{vT}, v{vLs[0]}\nv_mov_b32 v{vT + 1}, v{vLs[1]}")
    add(fixed, -1, f"s_lshl_b32 s{sTmp}, s{sW}, 10\ns_add_u32 s{sTmp}, s{sTmp}, 0x20000\nv_lshl_add_u32 v{vA}, v0, 3, s{sTmp}")
    add(fixed, 0, f"v_permlane32_swap_b32 v{vT}, v{vLs[0]}\nv_permlane32_swap_b32 v{vT + 1}, v{vLs[1]}")
    add(fixed, 1, f"v_add_f32 v{vLs[0]}, v{vLs[0]}, v{vT}\nv_add_f32 v{vLs[1]}, v{vLs[1]}, v{vT + 1}")
    add(fixed, 1, f"ds_write_b64 v{vA}, v[{vM[0]}:{vLs[0]}]\nds_write_b64 v{vA}, v[{vM[1]}:{vLs[1]}] offset:512")
    add(fixed, 3, f"v_xor_b32 v{vA}, 0x800, v{vA}")
    add(fixed, 7, "s_waitcnt lgkmcnt(0)\ns_barrier")
    add(fixed, 7, f"ds_read_b64 v[{vT}:{vT + 1}], v{vA}\nds_read_b64 v[{vT + 2}:{vT + 3}], v{vA} offset:512")
    add(fixed, 8, f"""s_sub_u32 s{sTmp}, s{sVr}, 0x4000
    s_and_b32 s{sTmp}, s{sTmp}, 0xffff
    s_cmp_eq_u32 s{sQh}, 0
    s_cselect_b32 s{sTmp}, s{sTmp}, s{sVr}
    s_or_b32 s{sTmp}, s{sTmp}, 0x10000""")
    add(fixed, 9, f"""s_lshl_b32 s{sTmp2}, s{sQh}, 14
    s_add_u32 s{sTmp2}, s{sTmp2}, 0x20000
    s_cmp_eq_u32 s{sKh}, 0
    s_cselect_b32 s{sRw}, s{sTmp2}, s{sTmp}
    s_cselect_b32 s{sRp}, s{sTmp}, s{sTmp2}""")
    vF = [24, 26]
    fac = []
    for qt in range(2):
        m2, l2 = vT + 2 * qt, vT + 2 * qt + 1
        t = vT + 5 + qt
        fac += [f"v_max_f32 v{t}, v{vM[qt]}, v{m2}",
                f"v_sub_f32 v{vF[qt]}, v{vM[qt]}, v{t}",
                f"v_sub_f32 v{vF[qt] + 1}, v{m2}, v{t}",
                f"v_exp_f32 v{vF[qt]}, v{vF[qt]}",
                f"v_exp_f32 v{vF[qt] + 1}, v{vF[qt] + 1}",
                f"v_mul_f32 v{t}, v{vLs[qt]}, v{vF[qt]}",
                f"v_fma_f32 v{t}, v{l2}, v{vF[qt] + 1}, v{t}",
                f"v_rcp_f32 v{t}, v{t}",
                f"v_mul_f32 v{vF[qt]}, v{vF[qt]}, v{t}",
                f"v_mul_f32 v{vF[qt] + 1}, v{vF[qt] + 1}, v{t}"]
    fill = distribute(16, fixed, fac, first=10, last=14)
    add(fill, 13, "s_waitcnt lgkmcnt(0)\ns_barrier")
    E.extend(interleave(mains, fill))
    vRw, vRp = vT + 12, vT + 13
    E(f"v_add_u32 v{vRw}, s{sRw}, v{vL16}\nv_add_u32 v{vRp}, s{sRp}, v{vL16}")
    own = []
    for db in range(2):
        for qt in range(2):
            for r in range(16):
                own.append(f"v_accvgpr_read_b32 v{32 + O(db, qt) + r}, a{O(db, qt) + r}")
    wr = [f"ds_write_b128 v{vRw}, {ar(64 + 4 * i)} offset:{i * 1024}" for i in range(16)]
    for i in range(16):
        for t in own[4 * i:4 * i + 4]:
            E(t)
        E(wr[i])
    E("s_waitcnt lgkmcnt(0)\ns_barrier")
    for i in range(12):
        E(f"ds_read_b128 {vr(XR + 4 * i)}, v{vRp} offset:{i * 1024}")
    for db in range(2):
        for qt in range(2):
            for r in range(0, 16, 2):
                x = 32 + O(db, qt) + r
                E(f"v_pk_mul_f32 v[{x}:{x + 1}], v[{x}:{x + 1}], v[{vF[qt]}:{vF[qt] + 1}] op_sel_hi:[1,0]")
    for i in range(12, 16):
        E(f"ds_read_b128 {vr(XR + 4 * i)}, v{vRp} offset:{i * 1024}")
    for db in range(2):
        for qt in range(2):
            for c in range(2):
                pk = 96 + 4 * ((db * 2 + qt) * 2 + c)
                for r in range(8 * c, 8 * c + 8, 2):
                    x = 32 + O(db, qt) + r
                    y = XR + O(db, qt) + r
                    E(f"v_pk_fma_f32 v[{x}:{x + 1}], v[{y}:{y + 1}], v[{vF[qt]}:{vF[qt] + 1}], v[{x}:{x + 1}] op_sel:[0,1,0] op_sel_hi:[1,1,1]")
                for r in range(8 * c, 8 * c + 8, 2):
                    x = 32 + O(db, qt) + r
                    E(f"v_cvt_pk_bf16_f32 v{pk + (r % 8) // 2}, v{x}, v{x + 1}")
                if qt == 0:
                    so = f"s{sCb}"
                else:
                    so = f"s{sTmp}"
                    E(f"s_add_u32 s{sTmp}, s{sCb}, {2 * 128 * 1024}")
                E(f"buffer_store_dwordx4 {vr(pk)}, v{vCo}, {SRD}, {so} offen offset:{db * 1024 + c * 512}")
    E(f"s_add_u32 s{sBlk}, s{sBlk}, 1\ns_cmp_lt_u32 s{sBlk}, 2\ns_cbranch_scc1 {name}_blk")
    E(f"{name}_done:\ns_endpgm")

    pend4 = [set(("a", FR(f) + j) for j in range(4)) for f in range(4)]
    auto_wait(init)
    auto_wait(pro)
    for b in (A0, B1, B0, C0, D1, E):
        auto_wait(b, lg_in=pend4)
    fix_hazards(init)
    fix_hazards(E, [D1])
    fix_hazards(pro, [init, E])
    fix_hazards(A0, [pro])
    fix_hazards(B1, [A0, B0])
    fix_hazards(B0, [B1])
    fix_hazards(C0, [B1])
    fix_hazards(D1, [A0, C0])
    fix_hazards(E, [D1])
    errs = check_trace([init, pro, A0, B1, B0, B1, C0, D1, E, pro, A0, D1, E, pro, A0, B1, C0, D1, E], "attn")
    assert errs == 0
    if stamps:
        def st(i):
            return [Ins(f"s_memtime s[{56 + 2 * i}:{57 + 2 * i}]")]
        init.ins[2:2] = st(0) + [Ins("s_memrealtime s[80:81]"), Ins(f"s_load_dwordx2 s[84:85], s[0:1], {KA_DBG}"), Ins("s_mov_b32 s86, 4096"), Ins("s_mov_b32 s87, 0x20000")]
        pro.ins[1:1] = st(1)
        pro.ins[4:4] = st(2)
        A0.ins[0:0] = st(3)
        D1.ins[1:1] = st(4)
        E.ins[0:0] = st(5)
        idx = [i for i, x in enumerate(E.ins) if x.text.startswith(f"s_add_u32 s{sBlk}")][0]
        dump = st(6) + [Ins("s_memrealtime s[82:83]"), Ins("s_waitcnt lgkmcnt(0)")]
        dump += [Ins(x) for x in f"""s_and_b32 s88, s2, 0xc7
s_cmp_lg_u32 s88, 0
s_cbranch_scc1 {name}_nodump
s_cmp_lg_u32 s{sW}, 0
s_cbranch_scc1 {name}_nodump
s_lshr_b32 s88, s2, 3
s_lshl_b32 s88, s88, 1
s_add_u32 s88, s88, s{sBlk}
s_lshl_b32 s88, s88, 5
v_mov_b32 v16, 0""".split("\n")]
        for i in range(1, 7):
            dump += [Ins(f"s_sub_u32 s89, s{56 + 2 * i}, s56"), Ins("v_mov_b32 v17, s89"), Ins(f"buffer_store_dword v17, v16, s[84:87], s88 offen offset:{4 * i}")]
        dump += [Ins("s_sub_u32 s89, s82, s80"), Ins("v_mov_b32 v17, s89"), Ins("buffer_store_dword v17, v16, s[84:87], s88 offen offset:0"), Ins("s_waitcnt vmcnt(0)")]
        dump += [Ins(f"{name}_nodump:")]
        E.ins[idx:idx] = dump
    text = kernel_header(name) + "\n" + "\n".join(b.text() for b in (init, pro, A0, B1, B0, C0, D1, E))
    return text, kernel_desc(name, 512, 256), f"; @launch kernel={name} grid=(256,1,1) block=(256,1,1) lds=163840"


def write_file(path, kernels):
    out = [k[2] for k in kernels]
    out.append('.amdgcn_target "amdgcn-amd-amdhsa--gfx950"\n.text')
    seen = set()
    for k in kernels:
        if k[0] not in seen:
            out.append(k[0])
            seen.add(k[0])
    out.append('.section .rodata,"a"')
    seen = set()
    for k in kernels:
        if k[1] not in seen:
            out.append(k[1])
            seen.add(k[1])
    open(path, "w").write("\n".join(out) + "\n")


if __name__ == "__main__":
    write_file("attn32.s", [gen_attn()])
    write_file("attn32_st.s", [gen_attn(stamps=True)])
```

```python
from asmlib import *
from layout import *

MF16 = "v_mfma_f32_16x16x32_bf16"
ar = lambda b, n=4: f"a[{b}:{b + n - 1}]"
vr = lambda b, n=4: f"v[{b}:{b + n - 1}]"


def srd(s, lo, size):
    return f"s_mov_b32 s{s}, s{lo}\ns_mov_b32 s{s + 1}, s{lo + 1}\ns_mov_b32 s{s + 2}, {size}\ns_mov_b32 s{s + 3}, 0x20000"


def ln_stream(vX, vT, vOffX, vOffS, srdX, srdWS, sRowX, sRowO, sStat):
    loads = [f"buffer_load_dwordx2 v[{vX + 2 * i}:{vX + 2 * i + 1}], v{vOffX}, {srdX}, s{sRowX} offen offset:{256 * i}" for i in range(5)]
    E = lambda i: vT + i
    a, b, c, d = vT + 20, vT + 21, vT + 22, vT + 23
    L = []

    def unpack(src):
        for i in range(10):
            L.append(f"v_lshlrev_b32 v{E(2 * i)}, 16, v{src + i}")
            L.append(f"v_and_b32 v{E(2 * i + 1)}, 0xffff0000, v{src + i}")

    def reduce32(r):
        for k in (8, 4, 2, 1):
            L.append(f"s_nop 1\nv_add_f32 v{r}, v{r}, v{r} row_ror:{k}")
        L.append(f"v_mov_b32 v{d}, v{r}\ns_nop 1\nv_permlane16_swap_b32 v{d}, v{r}\nv_add_f32 v{r}, v{r}, v{d}")

    def rbf(r):
        L.append(f"v_cvt_pk_bf16_f32 v{r}, v{r}, v{r}")
        L.append(f"v_and_b32 v{r}, 0xffff0000, v{r}")

    def stats():
        L.append(f"v_add_f32 v{a}, v{E(0)}, v{E(1)}")
        L.append(f"v_add_f32 v{b}, v{E(2)}, v{E(3)}")
        for i in range(4, 20, 2):
            L.append(f"v_add_f32 v{a}, v{a}, v{E(i)}")
            L.append(f"v_add_f32 v{b}, v{b}, v{E(i + 1)}")
        L.append(f"v_add_f32 v{a}, v{a}, v{b}")
        reduce32(a)
        L.append(f"v_mul_f32 v{a}, {1.0 / 640!r}, v{a}")
        L.append(f"v_sub_f32 v{c}, v{E(0)}, v{a}")
        L.append(f"v_mul_f32 v{b}, v{c}, v{c}")
        for i in range(1, 20):
            t = c if i % 2 == 0 else vT + 24
            L.append(f"v_sub_f32 v{t}, v{E(i)}, v{a}")
            L.append(f"v_fmac_f32 v{b}, v{t}, v{t}")
        reduce32(b)
        L.append(f"v_mul_f32 v{b}, {1.0 / 640!r}, v{b}")
        rbf(a)
        rbf(b)
        L.append(f"v_add_f32 v{b}, {1e-5!r}, v{b}")
        rbf(b)
        L.append(f"v_sqrt_f32 v{b}, v{b}\ns_nop 0")
        rbf(b)
        L.append(f"v_rcp_f32 v{b}, v{b}")

    unpack(vX)
    stats()
    for i in range(20):
        L.append(f"v_sub_f32 v{E(i)}, v{E(i)}, v{a}")
    for i in range(10):
        L.append(f"v_cvt_pk_bf16_f32 v{vX + i}, v{E(2 * i)}, v{E(2 * i + 1)}")
    unpack(vX)
    for i in range(20):
        L.append(f"v_mul_f32 v{E(i)}, v{E(i)}, v{b}")
    for i in range(10):
        L.append(f"v_cvt_pk_bf16_f32 v{vX + i}, v{E(2 * i)}, v{E(2 * i + 1)}")
    for i in range(5):
        L.append(f"s_add_u32 s{sRowX}, s{sRowO}, {4096 * i}\nbuffer_store_dwordx2 v[{vX + 2 * i}:{vX + 2 * i + 1}], v{vOffS}, {srdWS}, s{sRowX} offen")
    unpack(vX)
    stats()
    L.append(f"v_lshrrev_b32 v{c}, 5, v0\nv_lshlrev_b32 v{c}, 3, v{c}")
    L.append(f"buffer_store_dwordx2 v[{a}:{b}], v{c}, {srdWS}, s{sStat} offen")
    return loads, L


def gen_k1(name="k1_kernel", stamps=False, touch=False, rot=True, wlead=3, alead=2, bgap=44, tlb=0, ln_per=1, pt_step=10, nopt=False, noln=False, fine=None):
    NS = 16
    R = 8
    AD = 6
    WF = lambda f: 4 * (f % 8)
    AF = lambda ks, tt: 32 + 16 * (ks % AD) + 4 * tt
    PT = 128

    def ACC(part, nt, tt):
        i = (part * 8 + nt) * 4 + tt
        return ("v", 64 + 4 * i) if i < 48 else ("a", 192 + 4 * (i - 48))
    accs = lambda p, n, t: "%s[%d:%d]" % (ACC(p, n, t)[0], ACC(p, n, t)[1], ACC(p, n, t)[1] + 3)
    vTr = 2
    vA, vD, vSK, vSV, vPD, vPdel, vPt, vL16 = 10, 11, 12, 13, 14, 15, 16, 17
    vOffX, vOffS = 18, 19
    vD2 = 61
    vX, vT = 20, 30
    vAt = 56
    vE = 60
    sC, sUK, sUV, sWS, sXs, sP = 8, 12, 16, 20, 24, 28
    S = lambda b: f"s[{b}:{b + 3}]"
    sW, sH, sJ, sTmp, sTmp2, sWk, sM0, sRowX, sRowO, sStat, sPo, sPs = 32, 33, 34, 35, 36, 37, 38, 39, 40, 41, 42, 43
    sTT = 44
    sKo = 48
    sU = 52

    init = Block("init")
    init(f"""
    s_cmp_ge_u32 s2, 256
    s_cbranch_scc1 {name}_done
    ; stamp
    s_load_dwordx4 s[56:59], s[0:1], {KA_X}
    s_load_dwordx4 s[60:63], s[0:1], {KA_WUK}
    s_load_dwordx2 s[64:65], s[0:1], {KA_WO}
    s_load_dwordx2 s[66:67], s[0:1], {KA_W2}
    s_load_dwordx2 s[68:69], s[0:1], {KA_WS}
    v_lshrrev_b32 v1, 6, v0
    v_and_b32 v0, 63, v0
    v_readfirstlane_b32 s{sW}, v1
    v_lshlrev_b32 v{vL16}, 4, v0
    s_and_b32 s{sH}, s2, 7
    s_lshl_b32 s{sH}, s{sH}, 2
    s_lshr_b32 s{sTmp}, s2, 6
    s_add_u32 s{sH}, s{sH}, s{sTmp}
    s_bfe_u32 s{sJ}, s2, 0x30003
    """)
    init(f"""
    v_and_b32 v20, 15, v0
    v_lshrrev_b32 v21, 4, v0
    ; pi(p) = 16*(p/8) + 4*((p/4)%2) + p%4 = (p&7) + 2*(p&8)
    v_and_b32 v22, 7, v20
    v_and_b32 v23, 8, v20
    v_lshl_add_u32 v22, v23, 1, v22
    v_lshlrev_b32 v23, 4, v21
    v_lshl_add_u32 v{vA}, v22, 10, v23
    ; DMA voffset: row = g4 (0..3) (+4 per instr, +8w), chunk = p ^ (f(row)<<1), f(row) = (row%4) | ((row/8)%2)<<2 ; row/8 = w
    s_and_b32 s{sTmp}, s{sW}, 1
    s_lshl_b32 s{sTmp}, s{sTmp}, 2
    v_or_b32 v24, s{sTmp}, v21
    v_lshlrev_b32 v24, 1, v24
    v_xor_b32 v24, v24, v20
    v_lshlrev_b32 v24, 4, v24
    v_lshl_add_u32 v{vD}, v21, 13, v24
    ; tr addresses: row = 8*g4 + p/4 ; f = (p/4) | ((g4%2)<<2) ; addr = row*256 + ((nt^f)*32) + (p%4)*8
    v_lshrrev_b32 v24, 2, v20
    v_lshl_add_u32 v25, v21, 3, v24
    v_lshlrev_b32 v25, 8, v25
    v_and_b32 v26, 3, v20
    v_lshl_add_u32 v25, v26, 3, v25
    v_and_b32 v26, 1, v21
    v_lshl_or_b32 v26, v26, 2, v24
    """)
    for nt in range(8):
        init(f"v_xor_b32 v27, {nt}, v26\nv_lshl_add_u32 v{vTr + nt}, v27, 5, v25")
    init(f"""
    v_lshrrev_b32 v24, 1, v21
    v_lshlrev_b32 v24, 10, v24
    v_and_b32 v27, 1, v21
    v_lshl_add_u32 v24, v27, 9, v24
    v_lshl_add_u32 v{vSK}, v22, 4, v24
    v_lshl_add_u32 v{vSV}, v20, 4, v24
    """)
    init("s_waitcnt lgkmcnt(0)")
    init(srd(sXs, 56, S_ * M * 2))
    init(srd(sC, 58, S_ * DC * 2))
    init(srd(sUK, 60, DC * 4096 * 2))
    init(srd(sUV, 62, DC * 4096 * 2))
    init(srd(sWS, 68, WS_USED))
    init(f"""
    s_lshl_b32 s{sTmp}, s{sJ}, 8
    s_lshl_b32 s{sTmp2}, s{sW}, 6
    s_add_u32 s{sTmp}, s{sTmp}, s{sTmp2}
    s_lshl_b32 s{sTT}, s{sTmp}, 10
    v_add_u32 v{vAt}, s{sTT}, v{vA}
    v_add_u32 v{vAt + 1}, {8 * 1024}, v{vAt}
    v_add_u32 v{vAt + 2}, {32 * 1024}, v{vAt}
    v_add_u32 v{vAt + 3}, {40 * 1024}, v{vAt}
    ; rotation (in k-pairs): r = (j + 2*(h%4)) & 7
    s_lshl_b32 s{sTT + 1}, s{sH}, 1
    s_add_u32 s{sTT + 1}, s{sTT + 1}, s{sJ}
    s_and_b32 s{sTT + 1}, s{sTT + 1}, {7 if rot else 0}
    s_lshl_b32 s{sTT + 2}, s{sTT + 1}, 7
    s_lshl_b32 s{sTT + 3}, s{sTT + 1}, 19
    s_lshl_b32 s{sKo}, s{sTmp}, 8
    s_lshl_b32 s{sTmp2}, s{sH}, 19
    s_add_u32 s{sKo}, s{sKo}, s{sTmp2}
    s_add_u32 s{sKo}, s{sKo}, {KF_OFF}
    s_lshl_b32 s{sWk}, s{sH}, 8
    s_lshl_b32 s{sTmp2}, s{sW}, 16
    s_add_u32 s{sWk}, s{sWk}, s{sTmp2}
    s_lshl_b32 s{sM0}, s{sW}, 11
    """)

    sAo, sWo = sTT + 2, sTT + 3

    def dma(st):
        L = []
        for part in range(2):
            for i in range(2):
                pre = f"s_add_u32 s{sTT}, s{sWk}, s{sWo}\n" if (part == 0 and i == 0) else ""
                post = f"\ns_add_u32 s{sWo}, s{sWo}, {32 * 8192}\ns_and_b32 s{sWo}, s{sWo}, {DC * 8192 - 1}" if (part == 1 and i == 1) else ""
                L.append(pre + f"s_add_u32 m0, s{sM0}, {(st % R) * 16384 + part * 8192 + i * 1024}\n"
                         + ("s_nop 0\n" if not pre else "s_nop 0\n") +
                         f"buffer_load_dwordx4 v{vD if i == 0 else vD2}, {S(sUK if part == 0 else sUV)}, s{sTT} offen lds ; W:w{st}" + post)
        return L

    def actld(ks0):
        L = [f"buffer_load_dwordx4 {ar(AF(ks, tt))}, v{vAt + tt}, {S(sC)}, s{sAo} offen offset:{(ks - ks0) * 64}" for tt in range(4) for ks in (ks0, ks0 + 1)]
        L[-1] += f"\ns_add_u32 s{sAo}, s{sAo}, 128\ns_and_b32 s{sAo}, s{sAo}, 1023"
        return L

    init(f"v_add_u32 v{vD2}, {4 * 8192}, v{vD}")
    for t in dma(0) + actld(0) + dma(1):
        init(t)
    init(f"""
    v_and_b32 v24, 31, v0
    v_lshrrev_b32 v25, 5, v0
    v_mul_u32_u24 v26, 1280, v25
    v_lshl_add_u32 v{vOffX}, v24, 3, v26
    ; xn store offset: c = l%32: ks = c/8, g4 = (c/2)%4, half8 = c%2 ; tok%16 -> scalar + (l/32)
    v_lshrrev_b32 v26, 1, v24
    v_lshlrev_b32 v26, 8, v26
    v_and_b32 v27, 1, v24
    v_lshl_add_u32 v26, v27, 3, v26
    v_lshl_add_u32 v{vOffS}, v25, 4, v26
    s_lshl_b32 s{sTmp}, s2, 3
    s_lshl_b32 s{sTmp2}, s{sW}, 1
    s_add_u32 s{sTmp}, s{sTmp}, s{sTmp2}
    s_mul_i32 s{sRowX}, s{sTmp}, 1280
    s_lshl_b32 s{sStat}, s{sTmp}, 3
    s_add_u32 s{sStat}, s{sStat}, {ST_OFF}
    s_lshr_b32 s{sTmp2}, s{sTmp}, 4
    s_mul_i32 s{sRowO}, s{sTmp2}, 20480
    s_and_b32 s{sTmp2}, s{sTmp}, 15
    s_lshl_b32 s{sTmp2}, s{sTmp2}, 4
    s_add_u32 s{sRowO}, s{sRowO}, s{sTmp2}
    s_add_u32 s{sRowO}, s{sRowO}, {XN_OFF}
    """)
    init(f"""
    s_lshl_b32 s{sU}, s2, 2
    s_add_u32 s{sU}, s{sU}, s{sW}
    s_mul_i32 s{sTmp}, s{sU}, 52429
    s_lshr_b32 s{sTmp}, s{sTmp}, 18
    s_mul_i32 s{sTmp2}, s{sTmp}, 5
    s_sub_u32 s{sTmp2}, s{sU}, s{sTmp2}
    s_mul_i32 s{sPo}, s{sTmp}, 40960
    s_lshl_b32 s{sPs}, s{sTmp2}, 13
    s_add_u32 s{sPo}, s{sPo}, s{sPs}
    s_add_u32 s{sPo}, s{sPo}, {WT_OFF}
    s_cmp_lt_u32 s{sU}, 910
    s_cselect_b32 s{sPo}, s{sPo}, 0x40000000
    s_lshl_b32 s{sTmp2}, s{sTmp2}, 8
    s_cmp_lt_u32 s{sTmp}, 128
    s_cselect_b32 s{sP}, s64, s66
    s_cselect_b32 s{sP + 1}, s65, s67
    s_mov_b32 s{sP + 2}, {F * 640 * 2}
    s_cselect_b32 s{sP + 2}, {4096 * 640 * 2}, s{sP + 2}
    s_mov_b32 s{sP + 3}, 0x20000
    s_cselect_b32 s{sPs}, 0, 128
    s_sub_u32 s{sTmp}, s{sTmp}, s{sPs}
    s_mul_i32 s{sPs}, s{sTmp}, {32 * 1280}
    s_add_u32 s{sPs}, s{sPs}, s{sTmp2}
    """)
    init(f"""
    v_lshlrev_b32 v24, 1, v21
    v_xor_b32 v24, v24, v20
    v_lshlrev_b32 v24, 4, v24
    v_mul_u32_u24 v25, 1280, v21
    v_add_u32 v{vPD}, v24, v25
    v_xor_b32 v24, 128, v24
    v_add_u32 v{vPdel}, v24, v25
    """)
    ln_loads, ln_ops = ln_stream(vX, vT, vOffX, vOffS, S(sXs), S(sWS), sRowX, sRowO, sStat)
    if touch:
        init(f"""
        s_lshr_b32 s{sTmp}, s2, 3
        s_lshl_b32 s{sTmp}, s{sTmp}, 2
        s_add_u32 s{sTmp}, s{sTmp}, s{sW}
        s_lshl_b32 s{sTmp}, s{sTmp}, 14
        v_lshlrev_b32 v24, 7, v0
        buffer_load_dword v56, v24, {S(sC)}, s{sTmp} offen
        s_add_u32 s{sTmp}, s{sTmp}, 8192
        buffer_load_dword v57, v24, {S(sC)}, s{sTmp} offen
        ; W: q = j*4+w (0..31): rows 16q..16q+15, lane: row = l/4 , part = (l/2)%2 , line = l%2 -> two instrs with 32 rows? use both SRDs, 32 lanes useful
        s_lshl_b32 s{sTmp}, s{sJ}, 2
        s_add_u32 s{sTmp}, s{sTmp}, s{sW}
        s_lshr_b32 s{sTmp2}, s{sTmp}, 1
        s_lshl_b32 s{sTmp2}, s{sTmp2}, 18
        s_lshl_b32 s{sU}, s{sH}, 8
        s_add_u32 s{sTmp2}, s{sTmp2}, s{sU}
        v_lshrrev_b32 v24, 1, v0
        v_lshlrev_b32 v24, 13, v24
        v_and_b32 v25, 1, v0
        v_lshl_add_u32 v24, v25, 7, v24
        s_and_b32 s{sTmp}, s{sTmp}, 1
        s_cmp_eq_u32 s{sTmp}, 0
        s_cselect_b32 s70, s60, s62
        s_cselect_b32 s71, s61, s63
        global_load_dword v58, v24, s[70:71]
        """.replace("global_load_dword v58, v24, s[70:71]", f"v_add_u32 v24, s{sTmp2}, v24\n        global_load_dword v58, v24, s[70:71]"))
    if tlb:
        init(f"""
        v_lshlrev_b32 v24, {tlb}, v0
        buffer_load_dword v62, v24, {S(sUK)}, s{sWk} offen
        buffer_load_dword v63, v24, {S(sUV)}, s{sWk} offen
        """)
    for t in ([] if noln else ln_loads):
        init(t)
    ptd = []
    for j in range(8):
        q = 4 * j
        k = (q & 16) | ((q & 4) << 1) | ((q & 8) >> 1)
        reg = vPdel if (q // 8) % 2 else vPD
        ptd.append(f"s_lshl_b32 s{sTmp}, s{sW}, 13\ns_add_u32 m0, s{sTmp}, {131072 + j * 1024}\n"
                   f"s_add_u32 s{sTmp}, s{sPs}, {k * 1280}\n"
                   f"buffer_load_dwordx4 v{reg}, {S(sP)}, s{sTmp} offen lds ; W:pt")

    def trrd(st, f, dst, hi):
        part, nt = f // 8, f % 8
        off = (st % 4) * 16384 + part * 8192
        return [f"ds_read_b64_tr_b16 a[{dst}:{dst + 1}], v{vTr + nt} offset:{off}",
                f"ds_read_b64_tr_b16 a[{dst + 2}:{dst + 3}], v{vTr + nt} offset:{off + 1024}"]

    PF = 4
    init("; stamp")
    init("s_barrier ; R:w0")
    init("; stamp")
    for f in range(PF):
        for t in trrd(0, f, WF(f), 0):
            init(t)

    mains = []
    for st in range(NS):
        for f in range(16):
            part, nt = f // 8, f % 8
            for tt in range(4):
                c = accs(part, nt, tt) if st else "0"
                a, b = (ar(WF(f)), ar(AF(st, tt))) if part == 0 else (ar(AF(st, tt)), ar(WF(f)))
                mains.append(f"{MF16} {accs(part, nt, tt)}, {a}, {b}, {c}")
    sc = Sched(mains, 16)
    rd, sync, ld = [], [], []
    nxt = 2
    nxa = 2
    for st in range(NS):
        g0 = st * 64
        if st + 1 < NS:
            sync.append((g0 + bgap, f"s_barrier ; R:w{st + 1}", True))
        for f in range(16):
            t = st * 16 + f + PF
            st2, f2 = t // 16, t % 16
            if st2 >= NS:
                continue
            r = trrd(st2, f2, WF(f2), 0)
            if st2 % 4 == 0 and f2 < 8 and st2 > 0:
                rd.append((g0 + 4 * f, f"v_xor_b32 v{vTr + f2}, 0x10000, v{vTr + f2}\n" + r[0], True))
            else:
                rd.append((g0 + 4 * f, r[0], True))
            rd.append((g0 + 4 * f + 1, r[1], True))
        k = 0
        if nxa < NS and nxa <= st + alead:
            for t in actld(nxa):
                ld.append((g0 + 2 + 3 * k, t)); k += 1
            nxa += 2
        todo = [x for x in (nxt, nxt + 1) if x <= st + wlead and x < NS]
        for x in todo:
            for t in dma(x):
                ld.append((g0 + 2 + 3 * k, t)); k += 1
            nxt = x + 1
        if st == pt_step + 1 and not nopt:
            for t in ptd:
                ld.append((g0 + 2 + 3 * k, t)); k += 1
    sc.add(sync)
    sc.add(rd)
    sc.add(ld, maxper=1)
    if not noln:
        sc.add([(4 * 64, t) for t in ln_ops], maxper=ln_per)
    pts = []
    g = 13 * 64 + 6
    pts.append((g, f"s_lshl_b32 s{sPs}, s{sW}, 13\ns_add_u32 s{sPs}, s{sPs}, 65536"))
    for nt in range(8):
        d = PT + 4 * nt
        pts.append((g + 4 * nt + 4, f"v_add_u32 v{vPt}, s{sPs}, v{vTr + nt}\nds_read_b64_tr_b16 a[{d}:{d + 1}], v{vPt} ; R:pt"))
        pts.append((g + 4 * nt + 5, f"ds_read_b64_tr_b16 a[{d + 2}:{d + 3}], v{vPt} offset:1024"))
    g = 14 * 64 + 6
    for nt in range(8):
        pre = f"s_add_u32 s{sPo}, s{sPo}, 4096\n" if nt == 4 else ""
        pts.append((g + 4 * nt, pre + f"buffer_store_dwordx4 {ar(PT + 4 * nt)}, v{vL16}, {S(sWS)}, s{sPo} offen offset:{(nt % 4) * 1024}"))
    if not nopt:
        sc.add(pts, maxper=1)
    ep = []
    g0 = (NS - 1) * 64
    ep.append((g0 - 20, f"s_add_u32 s{sKo + 1}, s{sKo}, 4096\ns_add_u32 s{sKo + 2}, s{sKo}, 8192"))
    ep.append((g0 - 16, f"s_add_u32 s{sKo + 3}, s{sKo}, 12288"))
    nE = 0

    def pack(x, y, gap):
        nonlocal nE
        (tx, bx), (ty, by) = x, y
        if tx == "a":
            t = vE + 0
            base = 30 + 8 * (nE % 3) + 2
            base = [32, 40, 48][nE % 3]
            nE += 1
            for r in range(4):
                ep.append((gap, f"v_accvgpr_read_b32 v{base + r}, a{bx + r}"))
                ep.append((gap, f"v_accvgpr_read_b32 v{base + 4 + r}, a{by + r}"))
            bx, by = base, base + 4
        ep.append((gap, f"v_cvt_pk_bf16_f32 v{bx}, v{bx}, v{bx + 1}"))
        ep.append((gap, f"v_cvt_pk_bf16_f32 v{bx + 1}, v{bx + 2}, v{bx + 3}"))
        ep.append((gap, f"v_cvt_pk_bf16_f32 v{bx + 2}, v{by}, v{by + 1}"))
        ep.append((gap, f"v_cvt_pk_bf16_f32 v{bx + 3}, v{by + 2}, v{by + 3}"))
        return bx
    LAG = 6
    for m in range(4):
        for tt in range(4):
            gap = min(g0 + (2 * m + 1) * 4 + tt + LAG, g0 + 63)
            bx = pack(ACC(0, 2 * m, tt), ACC(0, 2 * m + 1, tt), gap)
            off = (tt // 2) * 8192 + m * 2048 + (tt % 2) * 128
            ep.append((gap, f"buffer_store_dwordx4 {vr(bx)}, v{vSK}, {S(sWS)}, s{sKo + off // 4096} offen offset:{off % 4096}"))
    ep.append((g0 + 32, "\n".join(f"s_add_u32 s{sKo + i}, s{sKo + i}, {VF_OFF - KF_OFF}" for i in range(4))))
    for nt in range(8):
        for a in range(2):
            gap = min(g0 + 32 + nt * 4 + 2 * a + 1 + LAG, g0 + 63)
            bx = pack(ACC(1, nt, 2 * a), ACC(1, nt, 2 * a + 1), gap)
            off = a * 8192 + (nt // 2) * 2048 + (nt % 2) * 256
            ep.append((gap, f"buffer_store_dwordx4 {vr(bx)}, v{vSV}, {S(sWS)}, s{sKo + off // 4096} offen offset:{off % 4096}"))
    sc.add(ep)
    body = sc.build()
    cnt = 0
    out = []
    for i in body.ins:
        if i.cls == "mfma":
            if cnt in (64, 128, 256, 384, 512, 640, 768, 960):
                out.append(Ins("; stamp"))
            cnt += 1
        out.append(i)
    body.ins = out
    body("; stamp")
    body(f"{name}_done:\ns_endpgm")
    init.extend(body)
    auto_wait(init)
    fix_hazards(init)
    assert check_trace([init], "k1") == 0
    if fine:
        out = []
        first = True
        cnt = 0
        for k, i in enumerate(init.ins):
            if i.text.strip() == "; stamp" and not first:
                continue
            if i.text.strip() == "; stamp":
                first = False
            if i.cls == "mfma":
                if cnt in fine:
                    out.append(Ins("; stamp"))
                cnt += 1
            out.append(i)
        init.ins = out
    apply_stamps([init], name, sW, stamps, stride=16)
    text = kernel_header(name) + "\n" + init.text()
    return text, kernel_desc(name, 512, 256), f"; @launch kernel={name} grid=(256,1,1) block=(256,1,1) lds=163840"


if __name__ == "__main__":
    from gen_attn import write_file
    write_file("k1.s", [gen_k1()])
    write_file("k1_st.s", [gen_k1(stamps=True)])
    write_file("k1_norot_st.s", [gen_k1(stamps=True, rot=False)])
    write_file("k1_l4_st.s", [gen_k1(stamps=True, wlead=5, alead=4)])
    write_file("k1_bare_st.s", [gen_k1(stamps=True, nopt=True, noln=True)])
    write_file("k1_tlb16_st.s", [gen_k1(stamps=True, nopt=True, noln=True, tlb=16)])
    write_file("k1_tlb20_st.s", [gen_k1(stamps=True, nopt=True, noln=True, tlb=20)])
```

```python
from asmlib import *
from layout import *
from gen_k1 import srd, MF16, ar, vr


def gen_k3(name="k3_kernel", stamps=False, wlead=3, alead=3, bgap=24):
    NS = 23
    R = 6
    AD = 4
    WF = lambda f: 4 * (f % 8)
    AF = lambda ks, tt: 32 + 16 * (ks % AD) + 4 * tt
    ACC = lambda nt, tt: 64 + 4 * (nt * 4 + tt)
    vTr = 2
    vD = 4
    vAt = 8
    vL16 = 12
    sWO, sW2, sWS = 8, 12, 16
    S = lambda b: f"s[{b}:{b + 3}]"
    sW, sX, sG, sNq, sTmp, sTmp2, sM0, sWoff, sAoff, sW2off, sA2off, sPo = range(32, 44)

    b = Block("k3")
    b(f"""
    s_cmp_ge_u32 s2, 256
    s_cbranch_scc1 {name}_done
    ; stamp
    s_load_dwordx2 s[56:57], s[0:1], {KA_WO}
    s_load_dwordx2 s[58:59], s[0:1], {KA_W2}
    s_load_dwordx2 s[60:61], s[0:1], {KA_WS}
    v_lshrrev_b32 v1, 6, v0
    v_and_b32 v0, 63, v0
    v_readfirstlane_b32 s{sW}, v1
    v_lshlrev_b32 v{vL16}, 4, v0
    s_and_b32 s{sX}, s2, 7
    s_lshr_b32 s{sNq}, s2, 6
    s_bfe_u32 s{sG}, s2, 0x30003
    v_and_b32 v20, 15, v0
    v_lshrrev_b32 v21, 4, v0
    """)
    b(f"""
    v_lshrrev_b32 v22, 1, v21
    v_lshlrev_b32 v22, 4, v22
    v_and_b32 v23, 1, v21
    v_lshl_add_u32 v22, v23, 2, v22
    v_lshrrev_b32 v24, 2, v20
    v_add_u32 v22, v22, v24
    v_mul_u32_u24 v22, 320, v22
    v_and_b32 v24, 3, v20
    v_lshl_add_u32 v22, v24, 3, v22
    v_lshl_add_u32 v{vTr}, v23, 5, v22
    v_xor_b32 v23, 1, v23
    v_lshl_add_u32 v{vTr + 1}, v23, 5, v22
    """)
    b(f"s_lshl_b32 s{sTmp}, s{sW}, 6\ns_mov_b32 s{sTmp2}, 52429")
    for i in range(3):
        b(f"""
        v_add_u32 v22, s{sTmp}, v0
        v_add_u32 v22, {256 * i}, v22
        v_mul_lo_u32 v23, v22, s{sTmp2}
        v_lshrrev_b32 v23, 20, v23
        v_mul_u32_u24 v24, 20, v23
        v_sub_u32 v24, v22, v24
        v_bfe_u32 v25, v23, 2, 1
        v_lshlrev_b32 v25, 1, v25
        v_xor_b32 v24, v24, v25
        v_mul_u32_u24 v23, 1280, v23
        v_lshl_add_u32 v{vD + i}, v24, 4, v23
        """)
    b("s_waitcnt lgkmcnt(0)")
    b(srd(sWO, 56, 4096 * 640 * 2))
    b(srd(sW2, 58, F * 640 * 2))
    b(srd(sWS, 60, WS_USED))
    b(f"""
    s_sub_u32 s{sTmp}, 15, s{sG}
    s_cmp_lt_u32 s{sW}, 2
    s_cselect_b32 s{sTmp}, s{sTmp}, s{sG}
    s_lshl_b32 s{sTmp}, s{sTmp}, 3
    s_and_b32 s{sTmp2}, s{sW}, 1
    s_lshl_b32 s{sTmp2}, s{sTmp2}, 2
    s_add_u32 s{sTmp}, s{sTmp}, s{sTmp2}
    s_mul_i32 s{sTmp}, s{sTmp}, {AF_TT}
    v_add_u32 v{vAt}, s{sTmp}, v{vL16}
    v_add_u32 v{vAt + 1}, {AF_TT}, v{vAt}
    v_add_u32 v{vAt + 2}, {2 * AF_TT}, v{vAt}
    v_add_u32 v{vAt + 3}, {3 * AF_TT}, v{vAt}
    s_lshl_b32 s{sAoff}, s{sX}, 14
    s_add_u32 s{sAoff}, s{sAoff}, {AF_OFF}
    s_mul_i32 s{sTmp2}, s{sNq}, 320
    s_mul_i32 s{sWoff}, s{sX}, {512 * 1280}
    s_add_u32 s{sWoff}, s{sWoff}, s{sTmp2}
    s_mul_i32 s{sTmp}, s{sX}, 7
    s_min_u32 s{sTmp}, s{sTmp}, 48
    s_lshl_b32 s{sA2off}, s{sTmp}, 10
    s_add_u32 s{sA2off}, s{sA2off}, {AF_OFF + 128 * 1024}
    s_mul_i32 s{sW2off}, s{sTmp}, {32 * 1280}
    s_add_u32 s{sW2off}, s{sW2off}, s{sTmp2}
    s_lshl_b32 s{sM0}, s{sW}, 10
    s_mul_i32 s{sPo}, s{sX}, {PF_X}
    s_lshr_b32 s{sTmp}, s2, 3
    s_lshl_b32 s{sTmp}, s{sTmp}, 2
    s_add_u32 s{sTmp}, s{sTmp}, s{sW}
    s_mul_i32 s{sTmp}, s{sTmp}, 20480
    s_add_u32 s{sPo}, s{sPo}, s{sTmp}
    s_add_u32 s{sPo}, s{sPo}, {PF_OFF}
    s_add_u32 s44, s{sA2off}, {6 * 1024}
    s_add_u32 s45, s{sW2off}, {6 * 32 * 1280}
    s_cmp_lt_u32 s{sX}, 6
    s_cselect_b32 s44, s44, 0x40000000
    s_cselect_b32 s45, s45, 0x40000000
    s_cmp_lt_u32 s{sW}, 2
    s_cselect_b32 s46, 0, 0x40000000
    v_add_u32 v{vD + 2}, s46, v{vD + 2}
    """)
    def src(st):
        if st < 6:
            return (sW2, f"s_add_u32 s{sTmp}, s{sW2off}, {st * 32 * 1280}", f"s_add_u32 s{sTmp2}, s{sA2off}, {st * 1024}")
        if st == 6:
            return (sW2, f"s_mov_b32 s{sTmp}, s45", f"s_mov_b32 s{sTmp2}, s44")
        k = st - 7
        return (sWO, f"s_add_u32 s{sTmp}, s{sWoff}, {k * 32 * 1280}", f"s_add_u32 s{sTmp2}, s{sAoff}, {k * 1024}")

    STG = 12288
    def dma(st):
        sr, wo, _ = src(st)
        L = []
        for i in range(3):
            L.append(f"s_add_u32 m0, s{sM0}, {(st % R) * STG + i * 4096}\n" + (wo if i == 0 else "s_nop 0") +
                     f"\nbuffer_load_dwordx4 v{vD + i}, {S(sr)}, s{sTmp} offen lds ; W:w{st}")
        return L

    def actld(st):
        _, _, ao = src(st)
        L = [f"buffer_load_dwordx4 {ar(AF(st, tt))}, v{vAt + tt}, {S(sWS)}, s{sTmp2} offen" for tt in range(4)]
        L[0] = ao + "\n" + L[0]
        return L

    def trrd(st, nt, dst):
        off = (st % R) * STG + (nt // 2) * 64
        assert off + 8 * 320 < 65536
        return [f"ds_read_b64_tr_b16 a[{dst}:{dst + 1}], v{vTr + nt % 2} offset:{off}",
                f"ds_read_b64_tr_b16 a[{dst + 2}:{dst + 3}], v{vTr + nt % 2} offset:{off + 8 * 320}"]

    for t in dma(0) + actld(0) + dma(1) + actld(1):
        b(t)
    PF = 4
    b("; stamp\ns_barrier ; R:w0\n; stamp")
    for f in range(PF):
        for t in trrd(0, f, WF(f)):
            b(t)
    mains = []
    for st in range(NS):
        for nt in range(10):
            for tt in range(4):
                c = vr(ACC(nt, tt)) if st else "0"
                mains.append(f"{MF16} {vr(ACC(nt, tt))}, {ar(WF(st * 10 + nt))}, {ar(AF(st, tt))}, {c}")
    sc = Sched(mains, 16)
    rd, sync, ld = [], [], []
    nxt = nxa = 2
    for st in range(NS):
        g0 = st * 40
        if st + 1 < NS:
            sync.append((g0 + bgap - 1, f"s_barrier ; R:w{st + 1}", True))
        for f in range(10):
            t = st * 10 + f + PF
            st2, f2 = t // 10, t % 10
            if st2 >= NS:
                continue
            r = trrd(st2, f2, WF(t))
            rd.append((g0 + 4 * f, r[0], True))
            rd.append((g0 + 4 * f + 1, r[1], True))
        k = 0
        L = []
        while nxa < NS and nxa <= st + alead and nxa - AD < st:
            L += actld(nxa); nxa += 1
        while nxt < NS and nxt <= st + wlead:
            L += dma(nxt); nxt += 1
        sp = max(2, 36 // max(1, len(L)))
        for k, t in enumerate(L):
            ld.append((g0 + 2 + sp * k, t))
    sc.add(sync)
    sc.add(rd)
    sc.add(ld, maxper=1)
    ep = []
    g0 = (NS - 1) * 40
    for m in range(5):
        for tt in range(4):
            gap = min(g0 + (2 * m + 1) * 4 + tt + 6, g0 + 39)
            x, y = ACC(2 * m, tt), ACC(2 * m + 1, tt)
            ep.append((gap, f"v_cvt_pk_bf16_f32 v{x}, v{x}, v{x + 1}"))
            ep.append((gap, f"v_cvt_pk_bf16_f32 v{x + 1}, v{x + 2}, v{x + 3}"))
            ep.append((gap, f"v_cvt_pk_bf16_f32 v{x + 2}, v{y}, v{y + 1}"))
            ep.append((gap, f"v_cvt_pk_bf16_f32 v{x + 3}, v{y + 2}, v{y + 3}"))
            ep.append((gap, f"s_add_u32 s{sTmp}, s{sPo}, {(tt * 5 + m) * 1024}\nbuffer_store_dwordx4 {vr(x)}, v{vL16}, {S(sWS)}, s{sTmp} offen"))
    sc.add(ep)
    body = sc.build()
    cnt = 0
    for i in body.ins:
        if i.cls == "mfma":
            if cnt in (80, 160, 280, 400, 560, 720, 880):
                b("; stamp")
            cnt += 1
        b.ins.append(i)
    b(f"; stamp\n{name}_done:\ns_endpgm")
    auto_wait(b)
    fix_hazards(b)
    assert check_trace([b], "k3") == 0
    apply_stamps([b], name, sW, stamps, stride=16)
    return kernel_header(name) + "\n" + b.text(), kernel_desc(name, 512, 256), f"; @launch kernel={name} grid=(256,1,1) block=(256,1,1) lds={R * STG}"


def gen_k4(name="k4_kernel"):
    b = Block("k4")
    S = lambda x: f"s[{x}:{x + 3}]"
    b(f"""
    s_cmp_ge_u32 s2, 640
    s_cbranch_scc1 {name}_done
    s_load_dwordx2 s[40:41], s[0:1], {KA_X}
    s_load_dwordx2 s[42:43], s[0:1], {KA_B2}
    s_load_dwordx2 s[44:45], s[0:1], {KA_OUT}
    s_load_dwordx2 s[46:47], s[0:1], {KA_WS}
    v_lshrrev_b32 v1, 6, v0
    v_and_b32 v0, 63, v0
    v_readfirstlane_b32 s24, v1
    v_lshlrev_b32 v2, 4, v0
    s_lshl_b32 s25, s2, 2
    s_add_u32 s25, s25, s24
    s_lshl_b32 s26, s25, 10
    s_add_u32 s26, s26, {PF_OFF}
    s_waitcnt lgkmcnt(0)
    """)
    b(srd(20, 46, WS_USED))
    for x in range(8):
        b(f"buffer_load_dwordx4 {vr(8 + 4 * x)}, v2, {S(20)}, s26 offen\ns_add_u32 s26, s26, {PF_X}")
    b(srd(8, 40, S_ * M * 2))
    b(srd(12, 42, M * 2))
    b(srd(16, 44, S_ * M * 2))
    b(f"""
    s_mul_i32 s27, s25, 52429
    s_lshr_b32 s27, s27, 22
    s_mul_i32 s28, s27, 80
    s_sub_u32 s28, s25, s28
    s_mul_i32 s29, s28, 52429
    s_lshr_b32 s29, s29, 18
    s_mul_i32 s30, s29, 5
    s_sub_u32 s30, s28, s30
    s_and_b32 s31, s27, 7
    s_sub_u32 s32, 15, s31
    s_cmp_lt_u32 s29, 8
    s_cselect_b32 s31, s32, s31
    s_lshl_b32 s31, s31, 3
    s_and_b32 s32, s29, 7
    s_add_u32 s31, s31, s32
    s_mul_i32 s31, s31, {16 * 1280}
    s_lshr_b32 s32, s27, 3
    s_mul_i32 s32, s32, 320
    s_lshl_b32 s33, s30, 6
    s_add_u32 s32, s32, s33
    s_add_u32 s31, s31, s32
    v_and_b32 v3, 15, v0
    v_lshrrev_b32 v4, 4, v0
    v_lshlrev_b32 v4, 3, v4
    v_mul_u32_u24 v3, 1280, v3
    v_add_u32 v3, v3, v4
    buffer_load_dwordx2 v[40:41], v3, {S(8)}, s31 offen
    buffer_load_dwordx2 v[42:43], v3, {S(8)}, s31 offen offset:32
    buffer_load_dwordx2 v[44:45], v4, {S(12)}, s32 offen
    buffer_load_dwordx2 v[46:47], v4, {S(12)}, s32 offen offset:32
    """)
    for src_ in list(range(8, 40, 4)) + [40, 44]:
        for j in range(4):
            lo, hi = 48 + 2 * j, 49 + 2 * j
            if src_ == 8:
                b(f"v_lshlrev_b32 v{lo}, 16, v{src_ + j}\nv_and_b32 v{hi}, 0xffff0000, v{src_ + j}")
            else:
                b(f"v_lshlrev_b32 v56, 16, v{src_ + j}\nv_and_b32 v57, 0xffff0000, v{src_ + j}\nv_add_f32 v{lo}, v{lo}, v56\nv_add_f32 v{hi}, v{hi}, v57")
    for j in range(4):
        b(f"v_cvt_pk_bf16_f32 v{8 + j}, v{48 + 2 * j}, v{49 + 2 * j}")
    b(f"buffer_store_dwordx2 v[8:9], v3, {S(16)}, s31 offen\nbuffer_store_dwordx2 v[10:11], v3, {S(16)}, s31 offen offset:32")
    b(f"{name}_done:\ns_endpgm")
    auto_wait(b)
    fix_hazards(b)
    assert check_trace([b], "k4") == 0
    return kernel_header(name) + "\n" + b.text(), kernel_desc(name, 64, 64, 64), f"; @launch kernel={name} grid=(640,1,1) block=(256,1,1) lds=0"


if __name__ == "__main__":
    from gen_attn import write_file
    write_file("k34.s", [gen_k3(), gen_k4()])
    write_file("k3_st.s", [gen_k3(stamps=True)])
```

```python
S_ = 2048
H = 32
D = 128
M = 640
DC = 512
F = 1728

MB = 1 << 20
XN_OFF = 0
ST_OFF = 3 * MB
KF_OFF = 16 * MB
VF_OFF = 32 * MB
AF_OFF = 48 * MB
AF_TT = 182 * 1024
PF_OFF = 72 * MB
PF_X = 32 * 80 * 1024
QF_OFF = 96 * MB
CF_OFF = 112 * MB
WT_OFF = 128 * MB
WS_USED = 136 * MB
WS_BYTES = 256 * MB

KA_X, KA_CKV, KA_WQ, KA_WUK, KA_WUV, KA_WO, KA_BX, KA_W1, KA_B1, KA_W2, KA_B2, KA_OUT, KA_DBG, KA_WS = [8 * i for i in range(14)]
FL_OFF = 3 * MB + 65536
FL2_OFF = FL_OFF + 8192
```

```python
from asmlib import *
from layout import *
from gen_k1 import srd, MF16, ar, vr
import struct

MF = "v_mfma_f32_32x32x16_bf16"
QSCALE = 1.4426950408889634 / (128 ** 0.5)
fbits = lambda x: "0x%08x" % struct.unpack("<I", struct.pack("<f", x))[0]
S = lambda b: f"s[{b}:{b + 3}]"

sWS, sWQ, sW1, sB1 = 4, 8, 12, 16
sW, sQh, sKh, sH, sG, sTmp, sTmp2, sOOB = range(20, 28)
sKn, sVn, sRem, sNext, sT2h, sKw, sVw, sCnt = range(28, 36)
sTh, sBlk, sCb, sCb2, sRw, sRp, sML, sSl = range(36, 44)
sWqo, sW1o, sXo, sM0, sKs, sHo, sWqb, sW1b = range(44, 52)
vL16, vL16b, vL16v, vL16vb = 1, 2, 3, 4
vKa, vVa0, vVa1, vCo = 5, 6, 7, 8
vM = [10, 12]
vLs = [11, 13]
vF = [14, 16]
vT = 18


def dma_K(par):
    L = [f"s_add_u32 m0, s{sKw}, {par * 0x4000}"]
    for i in range(4):
        L.append(f"buffer_load_dwordx4 v{vL16b if par else vL16}, {S(sWS)}, s{sKn} offen offset:{i * 1024} lds")
    if par:
        L += [f"s_xor_b32 s{sKw}, s{sKw}, 0x8000", f"s_mov_b32 s{sVn}, s{sKn}", f"s_add_u32 s{sKn}, s{sKn}, 0x8000",
              f"s_sub_u32 s{sRem}, s{sRem}, 1", f"s_cmp_eq_u32 s{sRem}, 0",
              f"s_cselect_b32 s{sKn}, s{sNext}, s{sKn}", f"s_cselect_b32 s{sRem}, s{sT2h}, s{sRem}", f"s_cselect_b32 s{sNext}, s{sOOB}, s{sNext}"]
    return L


def dma_V(par):
    L = [f"s_add_u32 m0, s{sVw}, {par * 0x4000}"]
    for i in range(4):
        L.append(f"buffer_load_dwordx4 v{vL16vb if par else vL16v}, {S(sWS)}, s{sVn} offen offset:{i * 1024} lds")
    if par:
        L.append(f"s_xor_b32 s{sVw}, s{sVw}, 0x8000")
    return L


def gen_p1(name, rot=True, wlead=3, alead=3, bgap=30):
    NS, R, AD, STG, RB = 20, 5, 4, 12288, 98304
    WF = lambda f: 192 + 4 * (f % 8)
    AFr = lambda ks, tt: 128 + 16 * (ks % AD) + 4 * tt
    QA = lambda nt, tt: 128 + 4 * (nt * 4 + tt)
    HA = lambda ft, tt: 64 + 4 * (ft * 4 + tt)
    vCS, vOne = 60, 56
    vTr, vTr1, vTrC = 32, 40, 44
    vD, vD2, vD1, vAt = 45, 46, 47, 48
    vQw = 52
    b = Block("p1")
    b(f"""
    s_cmp_ge_u32 s2, 256
    s_cbranch_scc1 {name}_done
    ; stamp
    s_load_dwordx2 s[56:57], s[0:1], {KA_WQ}
    s_load_dwordx4 s[60:63], s[0:1], {KA_W1}
    s_load_dwordx2 s[58:59], s[0:1], {KA_WS}
    v_lshrrev_b32 v{vT}, 6, v0
    v_and_b32 v0, 63, v0
    v_readfirstlane_b32 s{sW}, v{vT}
    v_lshlrev_b32 v{vL16}, 4, v0
    s_mov_b32 s{sOOB}, 0x40000000
    s_and_b32 s{sH}, s2, 7
    s_lshr_b32 s{sTmp}, s2, 6
    s_lshl_b32 s{sSl}, s{sTmp}, 3
    s_add_u32 s{sSl}, s{sSl}, s{sH}
    s_lshl_b32 s{sH}, s{sH}, 2
    s_add_u32 s{sH}, s{sH}, s{sTmp}
    s_bfe_u32 s{sG}, s2, 0x30003
    s_and_b32 s{sQh}, s{sW}, 1
    s_lshr_b32 s{sKh}, s{sW}, 1
    v_and_b32 v20, 15, v0
    v_lshrrev_b32 v21, 4, v0
    s_and_b32 s{sTmp}, s{sW}, 1
    s_lshl_b32 s{sTmp}, s{sTmp}, 2
    v_or_b32 v24, s{sTmp}, v21
    v_lshlrev_b32 v24, 1, v24
    v_xor_b32 v24, v24, v20
    v_lshlrev_b32 v24, 4, v24
    v_lshl_add_u32 v{vD}, v21, 13, v24
    v_add_u32 v{vD2}, {4 * 8192}, v{vD}
    ; W1 DMA: wave w rows 8w + l/8, pos = l%8, src chunk = pos ^ f, f = ((row/2)%2) | ((w%2)<<2)
    v_lshrrev_b32 v24, 3, v0
    v_bfe_u32 v25, v0, 4, 1
    v_or_b32 v25, s{sTmp}, v25
    v_and_b32 v26, 7, v0
    v_xor_b32 v25, v25, v26
    v_mul_u32_u24 v24, 3456, v24
    v_lshl_add_u32 v{vD1}, v25, 4, v24
    v_lshrrev_b32 v24, 2, v20
    v_lshl_add_u32 v25, v21, 3, v24
    v_lshlrev_b32 v27, 8, v25
    v_and_b32 v26, 3, v20
    v_lshl_add_u32 v27, v26, 3, v27
    v_add_u32 v27, {RB}, v27
    v_and_b32 v28, 1, v21
    v_lshl_or_b32 v29, v28, 2, v24
    """)
    for nt in range(8):
        b(f"v_xor_b32 v30, {nt}, v29\nv_lshl_add_u32 v{vTr + nt}, v30, 5, v27")
    b(f"""
    v_lshlrev_b32 v27, 7, v25
    v_and_b32 v30, 1, v20
    v_lshl_add_u32 v27, v30, 3, v27
    v_add_u32 v27, {RB + 8192}, v27
    v_bfe_u32 v29, v20, 3, 1
    v_lshl_or_b32 v29, v28, 2, v29
    v_and_b32 v30, 2, v20
    v_xor_b32 v29, v29, v30
    """)
    for ft in range(4):
        b(f"v_xor_b32 v30, {(ft // 2) * 4 + ft % 2}, v29\nv_lshl_add_u32 v{vTr1 + ft}, v30, 4, v27")
    b(f"""
    s_lshl_b32 s{sTmp}, s{sKh}, 2
    s_or_b32 s{sTmp}, s{sTmp}, s{sQh}
    v_xor_b32 v30, s{sTmp}, v29
    v_lshl_add_u32 v{vTrC}, v30, 4, v27
    s_waitcnt lgkmcnt(0)
    """)
    b(srd(sWQ, 56, M * 4096 * 2))
    b(srd(sW1, 60, M * F * 2))
    b(srd(sB1, 62, F * 2))
    b(srd(sWS, 58, WS_USED))
    b(f"""
    s_sub_u32 s{sTmp}, 15, s{sG}
    s_cmp_eq_u32 s{sKh}, 0
    s_cselect_b32 s{sTmp}, s{sTmp}, s{sG}
    s_lshl_b32 s{sTmp}, s{sTmp}, 3
    s_lshl_b32 s{sTmp2}, s{sQh}, 1
    s_add_u32 s{sHo}, s{sTmp}, s{sTmp2}
    s_mul_i32 s{sTmp}, s{sHo}, 20480
    v_add_u32 v{vAt}, s{sTmp}, v{vL16}
    v_add_u32 v{vAt + 1}, 20480, v{vAt}
    v_add_u32 v{vAt + 2}, {4 * 20480}, v{vAt}
    v_add_u32 v{vAt + 3}, {5 * 20480}, v{vAt}
    ; rotation start step: (2g + 5*(h%4)) mod 20
    s_and_b32 s{sTmp}, s{sH}, 3
    s_mul_i32 s{sTmp}, s{sTmp}, 5
    s_lshl_b32 s{sTmp2}, s{sG}, 1
    s_add_u32 s{sTmp}, s{sTmp}, s{sTmp2}
    s_sub_u32 s{sTmp2}, s{sTmp}, 20
    s_cmp_ge_u32 s{sTmp}, 20
    s_cselect_b32 s{sTmp}, s{sTmp2}, s{sTmp}
    s_mul_i32 s{sKs}, s{sTmp}, {1 if rot else 0}
    s_lshl_b32 s{sXo}, s{sKs}, 10
    s_lshl_b32 s{sWqb}, s{sH}, 8
    s_lshl_b32 s{sTmp2}, s{sW}, 16
    s_add_u32 s{sWqb}, s{sWqb}, s{sTmp2}
    s_lshl_b32 s{sW1b}, s{sSl}, 7
    s_mul_i32 s{sTmp2}, s{sW}, {8 * 3456}
    s_add_u32 s{sW1b}, s{sW1b}, s{sTmp2}
    s_cmp_lt_u32 s{sSl}, 27
    s_cselect_b32 s{sW1b}, s{sW1b}, s{sOOB}
    s_lshl_b32 s{sM0}, s{sW}, 10
    """)

    def dma(st):
        base = RB + (st % R) * STG
        return [f"s_lshl_b32 s{sWqo}, s{sKs}, 18\ns_add_u32 s{sWqo}, s{sWqo}, s{sWqb}\ns_lshl_b32 s{sTmp}, s{sM0}, 1",
                f"s_add_u32 m0, s{sTmp}, {base}\ns_mul_i32 s{sW1o}, s{sKs}, {32 * 3456}\nbuffer_load_dwordx4 v{vD}, {S(sWQ)}, s{sWqo} offen lds ; W:w{st}",
                f"s_add_u32 m0, s{sTmp}, {base + 1024}\ns_add_u32 s{sW1o}, s{sW1o}, s{sW1b}\nbuffer_load_dwordx4 v{vD2}, {S(sWQ)}, s{sWqo} offen lds ; W:w{st}",
                f"s_add_u32 m0, s{sM0}, {base + 8192}\ns_add_u32 s{sKs}, s{sKs}, 1\nbuffer_load_dwordx4 v{vD1}, {S(sW1)}, s{sW1o} offen lds ; W:w{st}",
                f"s_cmp_eq_u32 s{sKs}, 20\ns_cselect_b32 s{sKs}, 0, s{sKs}"]

    def actld(st):
        L = [f"buffer_load_dwordx4 {ar(AFr(st, tt))}, v{vAt + tt}, {S(sWS)}, s{sXo} offen" for tt in range(4)]
        L.append(f"s_add_u32 s{sXo}, s{sXo}, 1024\ns_cmp_eq_u32 s{sXo}, 20480\ns_cselect_b32 s{sXo}, 0, s{sXo}")
        return L
    assert XN_OFF == 0

    def trrd(st, f, dst):
        off = (st % R) * STG
        if f < 8:
            reg, d = vTr + f, 1024
        elif f < 12:
            reg, d = vTr1 + f - 8, 512
        else:
            reg, d = vTrC, 512
        return [f"ds_read_b64_tr_b16 a[{dst}:{dst + 1}], v{reg} offset:{off}",
                f"ds_read_b64_tr_b16 a[{dst + 2}:{dst + 3}], v{reg} offset:{off + d}"]

    for t in dma(0) + actld(0) + dma(1) + actld(1):
        b(t)
    b(f"""
    v_add_u32 v{vL16b}, 0x4000, v{vL16}
    v_add_u32 v{vL16v}, {VF_OFF - KF_OFF}, v{vL16}
    v_add_u32 v{vL16vb}, {VF_OFF - KF_OFF + 0x4000}, v{vL16}
    s_add_u32 s{sT2h}, s{sG}, 1
    s_sub_u32 s{sTh}, 17, s{sT2h}
    s_mov_b32 s{sRem}, s{sTh}
    s_lshl_b32 s{sTmp}, s{sH}, 19
    s_lshl_b32 s{sTmp2}, s{sW}, 12
    s_add_u32 s{sKn}, s{sTmp}, s{sTmp2}
    s_add_u32 s{sKn}, s{sKn}, {KF_OFF}
    s_mov_b32 s{sNext}, s{sKn}
    s_mov_b32 s{sKw}, s{sTmp2}
    s_or_b32 s{sVw}, s{sTmp2}, 0x10000
    s_mov_b32 s{sBlk}, 0
    s_lshl_b32 s{sTmp}, s{sKh}, 13
    s_or_b32 s{sTmp}, s{sTmp}, 0x8000
    v_add_u32 v{vKa}, s{sTmp}, v{vL16}
    s_mul_i32 s{sTmp2}, s{sKh}, 0x3000
    s_add_u32 s{sTmp2}, s{sTmp2}, 0x18000
    v_add_u32 v{vVa0}, s{sTmp2}, v{vL16}
    s_lshl_b32 s{sTmp2}, s{sKh}, 12
    s_add_u32 s{sTmp2}, s{sTmp2}, 0x19000
    v_add_u32 v{vVa1}, s{sTmp2}, v{vL16}
    ; ctx store lane offset: ((l%32)/16)*AF_TT + (l/32)*256 + (l%16)*16
    v_bfe_u32 v24, v0, 4, 1
    v_mul_u32_u24 v24, {AF_TT}, v24
    v_lshrrev_b32 v25, 5, v0
    v_lshl_add_u32 v24, v25, 8, v24
    v_lshl_add_u32 v{vCo}, v20, 4, v24
    s_lshl_b32 s{sTmp}, s{sH}, 12
    s_lshl_b32 s{sTmp2}, s{sKh}, 11
    s_add_u32 s{sTmp}, s{sTmp}, s{sTmp2}
    s_mul_i32 s{sTmp2}, s{sQh}, {2 * AF_TT}
    s_add_u32 s{sTmp}, s{sTmp}, s{sTmp2}
    s_add_u32 s{sTmp}, s{sTmp}, {AF_OFF}
    s_mul_i32 s{sTmp2}, s{sG}, {8 * AF_TT}
    s_add_u32 s{sCb2}, s{sTmp}, s{sTmp2}
    s_add_u32 s{sCb}, s{sTmp}, {15 * 8 * AF_TT}
    s_sub_u32 s{sCb}, s{sCb}, s{sTmp2}
    ; Q write address: area(kh? 0x20000 : 0x18000) + qh*0x4000 + (g4/2)*1024 + (g4%2)*512 + p*16
    s_lshl_b32 s{sTmp}, s{sKh}, 15
    s_lshl_b32 s{sTmp2}, s{sQh}, 14
    s_add_u32 s{sTmp}, s{sTmp}, s{sTmp2}
    s_add_u32 s{sTmp}, s{sTmp}, 0x18000
    v_lshlrev_b32 v24, 9, v21
    v_lshl_add_u32 v24, v20, 4, v24
    v_add_u32 v{vQw}, s{sTmp}, v24
    v_mov_b32 v{vOne}, 0x3f803f80
    v_mov_b32 v{vOne + 1}, 0x3f803f80
    v_mov_b32 v{vOne + 2}, 0x3f803f80
    v_mov_b32 v{vOne + 3}, 0x3f803f80
    """)
    NF = 13
    PF = 4
    b("; stamp\ns_barrier ; R:w0\n; stamp")
    for f in range(PF):
        for t in trrd(0, f, WF(f)):
            b(t)
    mains, fpos = [], []
    for st in range(NS):
        for f in range(NF):
            fpos.append(len(mains))
            w = ar(WF(st * NF + f))
            if f == 12:
                mains.append(f"{MF16} {vr(vCS)}, {w}, {vr(vOne)}, {vr(vCS) if st else '0'}")
                continue
            for tt in range(4):
                acc = vr(QA(f, tt) if f < 8 else HA(f - 8, tt))
                mains.append(f"{MF16} {acc}, {w}, {ar(AFr(st, tt))}, {acc if st else '0'}")
    G = 49
    sc = Sched(mains, 16)
    rd, sync, ld = [], [], []
    nxt = nxa = 2
    for st in range(NS):
        g0 = st * G
        if st + 1 < NS:
            sync.append((g0 + bgap, f"s_barrier ; R:w{st + 1}", True))
        for f in range(NF):
            t = st * NF + f + PF
            st2, f2 = t // NF, t % NF
            if st2 >= NS:
                continue
            r = trrd(st2, f2, WF(t))
            g = fpos[st * NF + f]
            assert st2 == st or g > g0 + bgap
            rd.append((g, r[0], True))
            rd.append((g + (1 if f < 12 else 0), r[1], True))
        L = []
        while nxa < NS and nxa <= st + alead and nxa - AD < st:
            L += actld(nxa); nxa += 1
        while nxt < NS and nxt <= st + wlead:
            L += dma(nxt); nxt += 1
        if st == 14:
            L += dma_K(0) + dma_K(1)[:5] + ["\n".join(dma_K(1)[5:])]
        if st == 15:
            L += dma_V(0) + dma_K(0)
        if st == 16:
            L += dma_V(1)
        if st == 17:
            L.append(f"s_lshl_b32 s{sTmp}, s{sHo}, 7\ns_add_u32 s{sTmp}, s{sTmp}, {ST_OFF}\nv_lshlrev_b32 v30, 3, v20")
            for tt in range(4):
                L.append(f"buffer_load_dwordx2 v[{22 + 2 * tt}:{23 + 2 * tt}], v30, {S(sWS)}, s{sTmp} offen offset:{[0, 128, 512, 640][tt]}")
            L.append(f"v_lshrrev_b32 v31, 1, v21\nv_lshlrev_b32 v31, 5, v31\nv_and_b32 v19, 1, v21\nv_lshl_add_u32 v31, v19, 3, v31\ns_lshl_b32 s{sTmp2}, s{sSl}, 7")
            for ft in range(4):
                L.append(f"buffer_load_dwordx2 a[{224 + 2 * ft}:{225 + 2 * ft}], v31, {S(sB1)}, s{sTmp2} offen offset:{(ft // 2) * 64 + (ft % 2) * 16}")
        sp = max(2, 44 // max(1, len(L)))
        for k, t in enumerate(L):
            ld.append((g0 + 2 + sp * k, t))
    sc.add(sync)
    sc.add(rd)
    sc.add(ld, maxper=1)
    ep = []
    g0 = (NS - 1) * G
    ep.append((g0 - 10, f"s_mov_b32 s{sWqo}, {fbits(QSCALE)}"))
    for m in range(4):
        for tt in range(4):
            gap = min(g0 + (2 * m + 1) * 4 + tt + 6, g0 + G - 1)
            x, y = QA(2 * m, tt), QA(2 * m + 1, tt)
            for r in range(4):
                ep.append((gap, f"v_mul_f32 v{x + r}, s{sWqo}, v{x + r}"))
                ep.append((gap, f"v_mul_f32 v{y + r}, s{sWqo}, v{y + r}"))
            ep.append((gap, f"v_cvt_pk_bf16_f32 v{x}, v{x}, v{x + 1}"))
            ep.append((gap, f"v_cvt_pk_bf16_f32 v{x + 1}, v{x + 2}, v{x + 3}"))
            ep.append((gap, f"v_cvt_pk_bf16_f32 v{x + 2}, v{y}, v{y + 1}"))
            ep.append((gap, f"v_cvt_pk_bf16_f32 v{x + 3}, v{y + 2}, v{y + 3}"))
    sc.add(ep)
    body = sc.build()
    cnt = 0
    for i in body.ins:
        if i.cls == "mfma":
            if cnt in (2 * G, 10 * G):
                b("; stamp")
            cnt += 1
        b.ins.append(i)
    b("; stamp")
    b("s_barrier")
    for m in range(4):
        for tt in range(4):
            b(f"ds_write_b128 v{vQw}, {vr(QA(2 * m, tt))} offset:{((tt // 2) * 8 + 2 * m) * 1024 + (tt % 2) * 256}")
    b(f"v_add_u32 v19, s{sM0}, v{vL16}\nds_write_b128 v19, {vr(vCS)} offset:0xc000")
    for ft in range(4):
        b(f"v_accvgpr_read_b32 v30, a{224 + 2 * ft}\nv_accvgpr_read_b32 v31, a{225 + 2 * ft}")
        b(f"v_lshlrev_b32 v{32 + 4 * ft}, 16, v30\nv_and_b32 v{33 + 4 * ft}, 0xffff0000, v30\nv_lshlrev_b32 v{34 + 4 * ft}, 16, v31\nv_and_b32 v{35 + 4 * ft}, 0xffff0000, v31")
    c0 = -2.0 * 0.7978845608028654 * 1.4426950408889634
    b(f"""
    s_mul_i32 s{sHo}, s{sHo}, {AF_TT}
    s_lshl_b32 s{sTmp}, s{sSl}, 11
    s_add_u32 s{sHo}, s{sHo}, s{sTmp}
    s_add_u32 s{sHo}, s{sHo}, {AF_OFF + 128 * 1024}
    s_lshl_b32 s{sTmp}, s{sQh}, 14
    s_add_u32 s{sTmp}, s{sTmp}, 0x18000
    v_add_u32 v30, s{sTmp}, v{vL16}
    s_waitcnt lgkmcnt(0)
    s_barrier
    v_mov_b32 v128, {fbits(c0)}
    v_mov_b32 v129, {fbits(c0 * 0.044715)}
    v_mov_b32 v130, 1.0
    """)
    for ft in range(4):
        b(f"ds_read_b128 {vr(48 + 4 * ft)}, v{vL16} offset:{0xc000 + ft * 1024}")
    for f in range(11):
        b(f"ds_read_b128 {ar(64 + 4 * f)}, v30 offset:{f * 1024}")
    b("s_waitcnt lgkmcnt(8)")
    for f in range(11, 16):
        b(f"ds_read_b128 {ar(64 + 4 * f)}, v30 offset:{f * 1024}")
    b(f"s_cmp_ge_u32 s{sSl}, 27\ns_cbranch_scc1 {name}_nogelu")
    ge = Block("gelu")
    p2 = lambda r: f"v[{r}:{r + 1}]"
    for tt in range(4):
        st_ = p2(22 + 2 * tt)
        for m in range(2):
            prs = [(HA(2 * m + i, tt) + r, 4 * (2 * m + i) + r) for i in range(2) for r in (0, 2)]
            T = [132 + 2 * k for k in range(4)]
            for (x, o) in prs:
                ge(f"v_pk_fma_f32 {p2(x)}, {p2(48 + o)}, {st_}, {p2(x)} op_sel_hi:[1,0,1] neg_lo:[0,1,0] neg_hi:[0,1,0]")
            for (x, o) in prs:
                ge(f"v_pk_fma_f32 {p2(x)}, {p2(x)}, {st_}, {p2(32 + o)} op_sel:[0,1,0] op_sel_hi:[1,1,1]")
            for k, (x, o) in enumerate(prs):
                ge(f"v_pk_mul_f32 {p2(T[k])}, {p2(x)}, {p2(x)}")
            for k in range(4):
                ge(f"v_pk_fma_f32 {p2(T[k])}, {p2(T[k])}, v[128:129], v[128:129] op_sel:[0,1,0] op_sel_hi:[1,1,0]")
            for k, (x, o) in enumerate(prs):
                ge(f"v_pk_mul_f32 {p2(T[k])}, {p2(T[k])}, {p2(x)}")
            for k in range(8):
                ge(f"v_exp_f32 v{132 + k}, v{132 + k}")
            for k in range(4):
                ge(f"v_pk_add_f32 {p2(T[k])}, {p2(T[k])}, v[130:131] op_sel_hi:[1,0]")
            for k in range(8):
                ge(f"v_rcp_f32 v{132 + k}, v{132 + k}")
            for k, (x, o) in enumerate(prs):
                ge(f"v_pk_mul_f32 {p2(T[k])}, {p2(T[k])}, {p2(x)}")
            d = HA(2 * m, tt)
            for k in range(4):
                ge(f"v_cvt_pk_bf16_f32 v{d + k}, v{T[k]}, v{T[k] + 1}")
            ge(f"s_add_u32 s{sTmp}, s{sHo}, {[0, 1, 4, 5][tt] * AF_TT + m * 1024}")
            ge(f"buffer_store_dwordx4 {vr(d)}, v{vL16}, {S(sWS)}, s{sTmp} offen")
    return b, ge


def gen_k2(name="k2_kernel", stamps=False, rot=True):
    p1, gelu = gen_p1(name, rot=rot)
    def O(db, qt):
        return ("v", 160 + 16 * (db * 2 + qt)) if db < 2 else ("a", 16 * ((db - 2) * 2 + qt))
    Os = lambda db, qt: "%s[%d:%d]" % (O(db, qt)[0], O(db, qt)[1], O(db, qt)[1] + 15)
    Q = lambda qt, s: 64 + 4 * (qt * 8 + s)
    FR = lambda f: 128 + 4 * (f % 16)
    Sb = lambda b, qt: 32 + 32 * b + 16 * qt
    Pb = lambda b, qt, ks: 96 + 16 * b + 8 * qt + 4 * ks
    NM = lambda qt: 128 + 16 * qt
    PAT, ZR, XR = 224, 240, 64
    PF = 6

    rdK = lambda n_par, s, slot: f"ds_read_b128 {ar(FR(slot))}, v{vKa} offset:{n_par * 0x4000 + s * 1024}"

    def rdV(n_par, f, slot, order=None):
        ks, db = order[f] if order else (f // 4, f % 4)
        return f"ds_read_b128 {ar(FR(slot))}, v{vVa0 if db < 2 else vVa1} offset:{n_par * 0x4000 + (db % 2) * 2048 + ks * 1024}"
    togK = f"v_xor_b32 v{vKa}, 0x8000, v{vKa}"
    togV = [f"v_xor_b32 v{vVa0}, 0x8000, v{vVa0}", f"v_xor_b32 v{vVa1}, 0x8000, v{vVa1}"]
    EORD = [(0, 2), (0, 3), (1, 2), (1, 3), (0, 0), (0, 1), (1, 0), (1, 1)]

    def softmax_ops(b, qts=(0, 1), pat=None, sub=False):
        elems = [(qt, 8 * c + j) for c in range(2) for qt in qts for j in range(8)]
        L = []

        def pre(i):
            if i < len(elems):
                qt, r = elems[i]
                x = Sb(b, qt) + r
                if sub:
                    L.append(f"v_sub_f32 v{x}, v{x}, v{vM[qt]}")
                if pat == qt:
                    L.append(f"v_add_f32 v{x}, v{x}, v{PAT + r}")
        pre(0)
        for i, (qt, r) in enumerate(elems + [(None, None)]):
            if qt is not None:
                x = Sb(b, qt) + r
                L.append(f"v_exp_f32 v{x}, v{x}")
                pre(i + 1)
            if i >= 1:
                pq, pr = elems[i - 1]
                x = Sb(b, pq) + pr
                L.append(f"v_add_f32 v{vLs[pq]}, v{vLs[pq]}, v{x}")
                if pr % 2 == 1:
                    L.append(f"v_cvt_pk_bf16_f32 v{Pb(b, pq, pr // 8) + (pr % 8) // 2}, v{x - 1}, v{x}")
        return L

    def pv(b, slot0, qts=(0, 1), order=None):
        L = []
        for f in range(8):
            ks, db = order[f] if order else (f // 4, f % 4)
            L.append([f"{MF} {Os(db, qt)}, {ar(FR(slot0 + f))}, {vr(Pb(b, qt, ks))}, {Os(db, qt)}" for qt in qts])
        return L

    def qk(b, slot0, qts=(0, 1), czero=False):
        L = []
        for s in range(8):
            L.append([f"{MF} {vr(Sb(b, qt), 16)}, {ar(FR(slot0 + s))}, {ar(Q(qt, s))}, " +
                      (vr(Sb(b, qt), 16) if s else ("0" if czero else vr(NM(qt), 16))) for qt in qts])
        return L

    def spread(items, first, last):
        n = len(items)
        return [(first + (last - first) * k // max(1, n), t) for k, t in enumerate(items)]

    def step(par, kind):
        groups, rds = [], []
        if kind != "A":
            groups += pv(par ^ 1, 0)
            rds += [[rdV(par ^ 1, f, f)] for f in range(8)]
        if kind != "D":
            groups += qk(par ^ 1, 8, qts=(1,) if kind == "C" else (0, 1))
            rk = [[rdK(par ^ 1, s, 8 + s)] for s in range(8)]
            if par == 1:
                rk[0] = [togK] + rk[0]
            rds += rk
        nxt = [[rdV(par, f, f if kind != "D" else 8 + f, EORD if kind == "D" else None)] for f in range(PF if kind != "D" else 8)]
        if par == 0:
            nxt[0] = togV + nxt[0]
        rds += nxt
        mains, fpos = [], []
        for g in groups:
            fpos.append(len(mains))
            mains += g
        if kind == "A":
            mains += [f"{MF} {Os(db, qt)}, {vr(ZR)}, {vr(ZR)}, 0" for db in range(4) for qt in range(2)]
        n = len(mains)
        sc = Sched(mains, 32)
        sc.add([(0, "s_waitcnt vmcnt(12)\ns_barrier", True)])
        r = []
        for f in range(len(groups)):
            for t in rds[f + PF] if f + PF < len(rds) else []:
                r.append((fpos[f], t, True))
        for k, f in enumerate(range(len(groups) + PF, len(rds))):
            for t in rds[f]:
                r.append((n - 1, t, True))
        sc.add(r)
        d = dma_V(par) + (dma_K(par) if kind != "D" else [])
        sc.add(spread(d, 1, n - 1), maxper=1)
        if kind == "D":
            sc.add([(1, f"s_lshl_b32 s{sTmp}, s{sQh}, 14\ns_add_u32 s{sTmp}, s{sTmp}, 0x20000\nv_add_u32 v{vT}, s{sTmp}, v{vL16}")] +
                   spread([f"ds_read_b128 {ar(64 + 4 * f)}, v{vT} offset:{f * 1024}" for f in range(16)], 2, 12), maxper=2)
        sm = softmax_ops(par, qts=(1,) if kind == "D" else (0, 1), pat={"C": 0, "D": 1}.get(kind), sub=(kind == "A"))
        first = 0 if kind == "A" else 2
        cap = None
        sc.add(spread(sm, first, n - (2 if kind == "D" else 0)))
        if kind == "D":
            sc.add([(n - 1, f"v_mov_b32 v{vT + 1}, v{vLs[0]}\nv_mov_b32 v{vT + 2}, v{vLs[1]}\n"
                            f"v_and_b32 v{vT + 3}, 0x8000, v{vKa}\nv_lshl_add_u32 v{vT + 3}, v0, 3, v{vT + 3}\nv_add_u32 v{vT + 3}, s{sM0}, v{vT + 3}\n"
                            f"v_permlane32_swap_b32 v{vT + 1}, v{vLs[0]}\nv_permlane32_swap_b32 v{vT + 2}, v{vLs[1]}\n"
                            f"v_add_f32 v{vLs[0]}, v{vLs[0]}, v{vT + 1}\nv_add_f32 v{vLs[1]}, v{vLs[1]}, v{vT + 2}\n"
                            f"ds_write_b64 v{vT + 3}, v[{vM[0]}:{vLs[0]}] offset:0x4000\nds_write_b64 v{vT + 3}, v[{vM[1]}:{vLs[1]}] offset:0x4200\n"
                            f"v_xor_b32 v{vT + 3}, 0x800, v{vT + 3}")])
        return sc.build()

    def maxpart(b):
        b(f"s_cmp_lg_u32 s{sTh}, 1\ns_cbranch_scc1 {b.name}_nopat")
        for r in range(16):
            b(f"v_add_f32 v{Sb(0, 0) + r}, v{Sb(0, 0) + r}, v{PAT + r}")
        b(f"{b.name}_nopat:")
        for j in range(0, 16, 4):
            for qt in range(2):
                s0, m, t = Sb(0, qt), vM[qt], vT + qt
                if j == 0:
                    b(f"v_max_f32 v{m}, v{s0}, v{s0 + 1}\nv_max_f32 v{t}, v{s0 + 2}, v{s0 + 3}")
                else:
                    b(f"v_max3_f32 v{m}, v{m}, v{s0 + j}, v{s0 + j + 1}\nv_max3_f32 v{t}, v{t}, v{s0 + j + 2}, v{s0 + j + 3}")
        for qt in range(2):
            b(f"v_max3_f32 v{vM[qt]}, v{vM[qt]}, v{vT + qt}, v{ZR + 4}")
        for qt in range(2):
            b(f"v_mov_b32 v{vT + qt}, v{vM[qt]}\nv_mov_b32 v{vLs[qt]}, 0")
        for qt in range(2):
            b(f"v_permlane32_swap_b32 v{vT + qt}, v{vM[qt]}")
        for qt in range(2):
            b(f"v_max_f32 v{vM[qt]}, v{vM[qt]}, v{vT + qt}")
        for qt in range(2):
            b(f"v_sub_f32 v{NM(qt)}, 0, v{vM[qt]}\nv_sub_f32 v{NM(qt) + 1}, 0, v{vM[qt]}")
        for r in range(2, 16, 2):
            for qt in range(2):
                b(f"v_pk_mov_b32 v[{NM(qt) + r}:{NM(qt) + r + 1}], v[{NM(qt)}:{NM(qt) + 1}], v[{NM(qt)}:{NM(qt) + 1}]")

    pro = Block(name + "_pro")
    pro(f"{name}_nogelu:")
    pro("; stamp")
    pro(f"""
    v_and_b32 v{vT}, 31, v0
    v_lshrrev_b32 v{vT + 1}, 5, v0
    v_lshlrev_b32 v{vT + 1}, 2, v{vT + 1}
    v_sub_u32 v{vT}, v{vT}, v{vT + 1}
    s_sub_u32 s{sTmp}, s{sQh}, s{sKh}
    s_lshl_b32 s{sTmp}, s{sTmp}, 5
    v_add_u32 v{vT}, s{sTmp}, v{vT}
    v_mov_b32 v{vT + 1}, 0xff800000
    v_mov_b32 v{ZR}, 0
    v_mov_b32 v{ZR + 1}, 0
    v_mov_b32 v{ZR + 2}, 0
    v_mov_b32 v{ZR + 3}, 0
    v_mov_b32 v{ZR + 4}, 0xf149f2ca
    s_waitcnt vmcnt(8)
    s_barrier
    {togK}
    """)
    for s in range(8):
        pro(rdK(0, s, s))
    for r in range(16):
        pro(f"v_cmp_gt_i32 vcc, {8 * (r // 4) + r % 4}, v{vT}\nv_cndmask_b32 v{PAT + r}, 0, v{vT + 1}, vcc")
    sc = Sched([m for g in qk(0, 0, czero=True) for m in g], 32)
    sc.add([(2 * s + 1, rdK(1, s, 8 + s), True) for s in range(PF)])
    sc.add(spread(dma_K(1), 0, 15), maxper=1)
    pro.extend(sc.build())
    maxpart(pro)

    A0 = Block("A0")
    A0(f"{name}_A:\n; stamp")
    A0.extend(step(0, "A"))
    A0(f"s_sub_u32 s{sCnt}, s{sTh}, 2\ns_cbranch_scc1 {name}_D")
    B1 = Block("B1")
    B1(f".p2align 6\n{name}_loop:")
    B1.extend(step(1, "B"))
    B1(f"s_sub_u32 s{sCnt}, s{sCnt}, 1\ns_cbranch_scc1 {name}_C")
    B0 = step(0, "B")
    B0(f"s_branch {name}_loop")
    C0 = Block("C0")
    C0(f"{name}_C:")
    C0.extend(step(0, "C"))
    D1 = Block("D1")
    D1(f"{name}_D:\n; stamp")
    D1.extend(step(1, "D"))
    D1(f"s_cmp_lg_u32 s{sBlk}, 0\ns_cbranch_scc1 {name}_El")

    def gen_E(last):
        E = Block(name + ("_El" if last else "_En"))
        if last:
            E(f"{name}_El:")
        E("; stamp")
        mains = [m for g in pv(1, 8, qts=(1,), order=EORD) for m in g]
        if not last:
            mains += [m for g in qk(0, 0, czero=True) for m in g]
        n = len(mains)
        sc = Sched(mains, 32)
        sc.pre = ["s_waitcnt vmcnt(12) lgkmcnt(0)\ns_barrier",
                  f"ds_read_b64 v[{vT + 4}:{vT + 5}], v{vT + 3} offset:0x4000\nds_read_b64 v[{vT + 6}:{vT + 7}], v{vT + 3} offset:0x4200"]
        if not last:
            sc.add([(0, togK, True)] + [(1 + s // 2, rdK(0, s, s), True) for s in range(8)])
        vRw, vRp = vT + 8, vT + 9
        sc.add([(0, f"v_and_b32 v{vT}, 0x18000, v{vVa0}"), (0, f"v_mov_b32 v{vT + 1}, 0x20000"),
                (0, f"s_lshl_b32 s{sTmp}, s{sQh}, 14"), (0, f"v_add_u32 v{vT + 2}, s{sTmp}, v{vL16}"),
                (0, f"s_cmp_eq_u32 s{sKh}, 0\ns_cselect_b64 vcc, -1, 0"),
                (1, f"v_cndmask_b32 v{vRw}, v{vT}, v{vT + 1}, vcc"), (1, f"v_cndmask_b32 v{vRp}, v{vT + 1}, v{vT}, vcc"),
                (1, f"v_add_u32 v{vRw}, v{vRw}, v{vT + 2}"), (1, f"v_add_u32 v{vRp}, v{vRp}, v{vT + 2}")])
        wr = []
        for db in range(2):
            for j in range(4):
                wr.append((2, f"ds_write_b128 v{vRw}, {ar(32 * db + 4 * j)} offset:{(8 * db + j) * 1024}"))
        for db in range(2):
            for j in range(4):
                wr.append((6, f"ds_write_b128 v{vRw}, {ar(32 * db + 16 + 4 * j)} offset:{(8 * db + 4 + j) * 1024}"))
        gb = min(n - 1, 11)
        wr.append((gb, "s_waitcnt lgkmcnt(0)\ns_barrier", True))
        for i in range(16):
            wr.append((gb, f"ds_read_b128 {vr(XR + 4 * i)}, v{vRp} offset:{i * 1024}"))
        if not last:
            for s in range(PF):
                wr.append((gb, rdK(1, s, 8 + s)))
        sc.add(wr, maxper=3)
        fac = []
        for qt in range(2):
            m2, l2, t = vT + 4 + 2 * qt, vT + 5 + 2 * qt, vT + 10 + qt
            fac += [f"v_max_f32 v{t}, v{vM[qt]}, v{m2}", f"v_sub_f32 v{vF[qt]}, v{vM[qt]}, v{t}", f"v_sub_f32 v{vF[qt] + 1}, v{m2}, v{t}",
                    f"v_exp_f32 v{vF[qt]}, v{vF[qt]}", f"v_exp_f32 v{vF[qt] + 1}, v{vF[qt] + 1}",
                    f"v_mul_f32 v{t}, v{vLs[qt]}, v{vF[qt]}", f"v_fma_f32 v{t}, v{l2}, v{vF[qt] + 1}, v{t}", f"v_rcp_f32 v{t}, v{t}",
                    f"v_mul_f32 v{vF[qt]}, v{vF[qt]}, v{t}", f"v_mul_f32 v{vF[qt] + 1}, v{vF[qt] + 1}, v{t}"]
        own = []
        for qt in range(2):
            for db in range(2):
                for r in range(16):
                    x = O(db, qt)[1] + r
                    own.append((3 if qt == 0 else min(n - 1, 10), f"v_mul_f32 v{x}, v{vF[qt]}, v{x}"))
        sc.add([(2, t) for t in fac] + own)
        if not last:
            sc.add(spread(dma_K(1), gb + 1, n - 1), maxper=1)
        E.extend(sc.build())
        for db in range(2):
            for qt in range(2):
                for c in range(2):
                    x0 = O(db, qt)[1] + 8 * c
                    y0 = XR + 16 * (db * 2 + qt) + 8 * c
                    for r in range(0, 8, 2):
                        E(f"v_pk_fma_f32 v[{x0 + r}:{x0 + r + 1}], v[{y0 + r}:{y0 + r + 1}], v[{vF[qt]}:{vF[qt] + 1}], v[{x0 + r}:{x0 + r + 1}] op_sel:[0,1,0] op_sel_hi:[1,1,1]")
                    for r in range(0, 8, 2):
                        E(f"v_cvt_pk_bf16_f32 v{y0 + r // 2}, v{x0 + r}, v{x0 + r + 1}")
                    E(f"s_add_u32 s{sTmp}, s{sCb}, {qt * 4 * AF_TT}")
                    E(f"buffer_store_dwordx4 {vr(y0)}, v{vCo}, {S(sWS)}, s{sTmp} offen offset:{db * 1024 + c * 512}")
        if last:
            E(f"{name}_done:\ns_endpgm")
        else:
            E(f"s_mov_b32 s{sTh}, s{sT2h}\ns_mov_b32 s{sCb}, s{sCb2}\ns_mov_b32 s{sBlk}, 1")
            maxpart(E)
            E(f"s_branch {name}_A")
        return E
    En, El = gen_E(False), gen_E(True)

    pend = lambda s0, n=PF: [set(("a", FR(s0 + f) + j) for j in range(4)) for f in range(n)]
    lg, vm = auto_wait(p1)
    auto_wait(gelu, lg_in=lg, vm_in=vm)
    auto_wait(pro, lg_in=lg)
    auto_wait(A0, lg_in=pend(8))
    for b in (B1, B0, C0, D1):
        auto_wait(b, lg_in=pend(0))
    auto_wait(En)
    auto_wait(El)
    fix_hazards(p1)
    fix_hazards(gelu, [p1])
    fix_hazards(pro, [p1, gelu])
    for _ in range(2):
        fix_hazards(A0, [pro, En])
        fix_hazards(B1, [A0, B0])
        fix_hazards(B0, [B1])
        fix_hazards(C0, [B1])
        fix_hazards(D1, [A0, C0])
        fix_hazards(En, [D1])
        fix_hazards(El, [D1])
    errs = check_trace([p1, gelu, pro, A0, B1, B0, B1, C0, D1, En, A0, D1, El], "k2a")
    errs += check_trace([p1, pro, A0, B1, C0, D1, En, A0, B1, B0, B1, C0, D1, El], "k2b")
    assert errs == 0
    blocks = [p1, gelu, pro, A0, B1, B0, C0, D1, En, El]
    apply_stamps(blocks, name, sW, stamps, stride=8)
    text = kernel_header(name) + "\n" + "\n".join(b.text() for b in blocks)
    return text, kernel_desc(name, 512, 256), f"; @launch kernel={name} grid=(256,1,1) block=(256,1,1) lds=163840"


if __name__ == "__main__":
    from gen_attn import write_file
    from gen_k1 import gen_k1
    from gen_k3 import gen_k3, gen_k4
    write_file("k2.s", [gen_k2()])
    write_file("k2_st.s", [gen_k2(stamps=True)])
    write_file("full.s", [gen_k1(nopt=True), gen_k2(), gen_k3(), gen_k4()])
```

```python
import re

TRANS = ("v_exp_f32", "v_log_f32", "v_rcp_f32", "v_rsq_f32", "v_sqrt_f32", "v_sin_f32", "v_cos_f32")
REG_RE = re.compile(r"^(-)?(abs\()?\|?([vas])(\d+|\[(\d+):(\d+)\])\|?\)?$")


def regs_of(tok):
    tok = tok.strip()
    if tok in ("vcc", "exec"):
        return [(tok, 0), (tok, 1)]
    if tok in ("vcc_lo", "exec_lo"):
        return [(tok[:-3], 0)]
    if tok in ("vcc_hi", "exec_hi"):
        return [(tok[:-3], 1)]
    if tok == "m0":
        return [("m0", 0)]
    m = REG_RE.match(tok)
    if not m:
        return []
    t = m.group(3)
    if m.group(5) is not None:
        return [(t, i) for i in range(int(m.group(5)), int(m.group(6)) + 1)]
    return [(t, int(m.group(4)))]


class Ins:
    __slots__ = ("text", "op", "ops", "mods", "w", "r", "cls", "passes", "srcc", "srcab", "states", "data", "note")

    def __init__(self, text):
        self.text = text
        t = text.split(";")[0].strip()
        self.w = []
        self.r = []
        self.passes = 0
        self.srcc = []
        self.srcab = []
        self.data = []
        self.states = 1
        self.note = None
        if not t or t.endswith(":") or t.startswith("."):
            self.op = ""
            self.ops = []
            self.mods = []
            self.cls = "label" if t.endswith(":") else "none"
            self.states = 0
            return
        parts = t.split(None, 1)
        op = parts[0]
        self.op = op
        rest = parts[1] if len(parts) > 1 else ""
        ops, cur, depth = [], "", 0
        for ch in rest:
            if ch in "[(":
                depth += 1
            if ch in "])":
                depth -= 1
            if ch == "," and depth == 0:
                ops.append(cur.strip())
                cur = ""
            else:
                cur += ch
        last = cur.strip().split()
        mods = []
        if last:
            ops.append(last[0])
            mods = last[1:]
        self.ops = ops
        self.mods = mods
        R = [regs_of(o) for o in ops]
        flat = lambda L: [x for l in L for x in l]
        if op.startswith("v_mfma"):
            self.cls = "mfma"
            self.passes = 8 if "32x32x16" in op else 4
            self.w = R[0]
            self.srcab = R[1] + R[2]
            self.srcc = R[3]
            self.r = self.srcab + self.srcc
        elif op.startswith("ds_"):
            self.cls = "ds"
            if op.startswith("ds_write"):
                self.r = flat(R)
                self.data = flat(R[1:])
            else:
                self.w = R[0]
                self.r = flat(R[1:])
        elif op.startswith("buffer_") or op.startswith("global_"):
            self.cls = "vmem"
            if op in ("buffer_wbl2", "buffer_inv"):
                pass
            elif "lds" in mods:
                self.r = flat(R) + [("m0", 0)]
                self.cls = "dma"
            elif "_store" in op or "_atomic" in op:
                self.r = flat(R)
                if op.startswith("buffer_"):
                    self.data = R[0]
                else:
                    self.data = R[1]
                if "_atomic" in op and "sc0" in mods:
                    self.w = R[0]
            else:
                self.w = R[0] if ops[0] not in ("a255", "v255") else []
                self.r = flat(R[1:])
        elif op.startswith("s_load") or op in ("s_memtime", "s_memrealtime"):
            self.cls = "smem"
            self.w = R[0]
            self.r = flat(R[1:])
        elif op == "s_waitcnt":
            self.cls = "wait"
        elif op == "s_nop":
            self.cls = "nop"
            self.states = int(ops[0], 0) + 1
        elif op.startswith("s_"):
            self.cls = "salu"
            if op.startswith("s_cmp") or op.startswith("s_bitcmp"):
                self.r = flat(R)
                self.w = [("scc", 0)]
            elif op.startswith("s_cbranch") or op in ("s_branch", "s_barrier", "s_endpgm", "s_setprio", "s_sleep"):
                self.cls = "ctl"
                if "vcc" in op:
                    self.r = [("vcc", 0), ("vcc", 1)]
            else:
                self.w = list(R[0])
                self.r = flat(R[1:])
                if "saveexec" in op:
                    self.w += [("exec", 0), ("exec", 1)]
        elif op.startswith("v_"):
            base = op.replace("_e32", "").replace("_e64", "").replace("_dpp", "").replace("_sdwa", "")
            self.cls = "trans" if base in TRANS else "valu"
            if base.startswith("v_permlane") and "swap" in base:
                self.w = R[0] + R[1]
                self.r = R[0] + R[1]
                self.note = "permlane"
            elif base.startswith("v_cmp"):
                self.w = list(R[0])
                self.r = flat(R[1:])
                if base.startswith("v_cmpx"):
                    self.w += [("exec", 0), ("exec", 1)]
            elif base in ("v_add_co_u32", "v_sub_co_u32", "v_addc_co_u32", "v_subb_co_u32"):
                self.w = R[0] + R[1]
                self.r = flat(R[2:])
            else:
                self.w = R[0]
                self.r = flat(R[1:])
                if base in ("v_fmac_f32", "v_pk_fmac_f16", "v_dot2c_f32_bf16", "v_writelane_b32"):
                    self.r += R[0]
                if base in ("v_readfirstlane_b32", "v_readlane_b32"):
                    self.note = "readlane"
            if any(m.startswith(("row_", "quad_perm", "wave_")) for m in mods):
                self.note = "dpp"
            if "sdwa" in op and any(m.startswith("dst_sel") and "DWORD" not in m for m in mods):
                self.note = "dstsel"
        else:
            raise ValueError("unknown instruction: " + text)
        if ";" in text:
            for tok in text.split(";", 1)[1].split():
                if tok.startswith("W:"):
                    self.w = list(self.w) + [("lds", tok[2:])]
                elif tok.startswith("R:"):
                    self.r = list(self.r) + [("lds", tok[2:])]

    def is_valu(self):
        return self.cls in ("valu", "trans")


def need_states(p, c):
    n = 0
    pw, cr, cw = set(p.w), set(c.r), set(c.w)
    raw = pw & cr
    waw = pw & cw
    vraw = {x for x in raw if x[0] in "va"}
    sraw = {x for x in raw if x[0] in ("s", "vcc")}
    if p.is_valu():
        if c.cls == "mfma" and vraw:
            n = max(n, 2)
        if p.cls == "trans" and c.is_valu() and c.cls != "trans" and vraw:
            n = max(n, 1)
        if p.cls == "trans" and c.cls == "trans" and vraw:
            n = max(n, 1)
        if sraw and c.is_valu():
            n = max(n, 4 if c.note == "readlane" else 2)
        if sraw and c.cls in ("vmem", "dma"):
            n = max(n, 5)
        if sraw and c.cls in ("salu", "ctl", "smem"):
            n = max(n, 1)
        if vraw and c.note == "readlane":
            n = max(n, 1)
        if vraw and c.note in ("dpp", "permlane"):
            n = max(n, 2)
        if p.note == "dstsel" and (vraw or waw) and c.is_valu():
            n = max(n, 1)
        if ("exec", 0) in pw:
            if c.cls == "mfma" or c.note in ("readlane", "permlane"):
                n = max(n, 4)
            if c.note == "dpp":
                n = max(n, 5)
    if p.cls == "mfma":
        big = p.passes + 4
        if c.cls == "mfma":
            if pw & set(c.srcab):
                n = max(n, big)
            ov = pw & set(c.srcc)
            if ov and not (list(p.w) == list(c.srcc) and p.passes == c.passes):
                n = max(n, p.passes + 2)
            if waw and p.passes != c.passes:
                n = max(n, big)
        elif c.is_valu():
            if raw or waw:
                n = max(n, big)
            if set(p.srcc) & cw:
                n = max(n, p.passes - 1)
        elif c.cls in ("vmem", "ds", "dma"):
            if raw or waw:
                n = max(n, big)
            if set(p.srcc) & cw:
                n = max(n, p.passes - 1)
    if p.cls == "salu" and ("m0", 0) in pw and c.cls == "dma":
        n = max(n, 1)
    if p.cls == "vmem" and len(p.data) >= 3 and (set(p.data) & cw):
        n = max(n, 2 if c.is_valu() else 1)
    if p.cls == "ds" and len(p.data) >= 3 and (set(p.data) & cw) and c.is_valu():
        n = max(n, 1)
    return n


MAXD = 14


class Block:
    def __init__(self, name=""):
        self.name = name
        self.ins = []

    def __call__(self, text):
        for l in text.split("\n"):
            l = l.strip()
            if l:
                self.ins.append(Ins(l))
        return self

    def extend(self, other):
        self.ins += other.ins

    def text(self):
        out = []
        for i in self.ins:
            out.append(i.text if i.cls in ("label",) else "    " + i.text)
        return "\n".join(out)


def fix_hazards(block, prev=None):
    tails = [[]]
    if prev:
        tails = [[i for i in p.ins if i.states][-MAXD:] for p in prev]
    out = []
    nins = 0
    for c in block.ins:
        if c.states == 0:
            out.append(c)
            continue
        need = 0
        for tail in tails:
            hist = tail + [i for i in out[-3 * MAXD:] if i.states][-MAXD:] if nins < MAXD else [i for i in out[-3 * MAXD:] if i.states][-MAXD:]
            d = 0
            for p in reversed(hist):
                n = need_states(p, c)
                if n > d:
                    need = max(need, n - d)
                d += p.states
                if d >= MAXD:
                    break
        while need > 0:
            k = min(need, 16)
            out.append(Ins(f"s_nop {k - 1}"))
            nins += 1
            need -= k
        out.append(c)
        nins += 1
    block.ins = out
    return block


def check_trace(blocks, name="trace", verbose=True):
    seq = [i for b in blocks for i in b.ins if i.states]
    errs = 0
    lg = []
    vm = []
    NOSCC = ("s_mov_b32", "s_mov_b64", "s_cselect_b32", "s_cselect_b64", "s_mul_i32", "s_mul_hi_u32", "s_movk_i32", "s_getreg_b32")
    lastscc = None
    for idx, c in enumerate(seq):
        if c.op.startswith("s_cselect") or c.op.startswith("s_cbranch_scc"):
            ok = lastscc is not None and ((lastscc.op.startswith("s_cmp") or lastscc.op.startswith("s_bitcmp")) or (c.op.startswith("s_cbranch") and lastscc is seq[idx - 1]))
            if not ok:
                errs += 1
                print(f"[{name}] SCC suspicious: '{lastscc.text if lastscc else None}' -> '{c.text}'")
        if c.cls == "salu" and c.op not in NOSCC:
            lastscc = c
        d = 0
        for j in range(idx - 1, max(-1, idx - MAXD - 1), -1):
            p = seq[j]
            n = need_states(p, c)
            if n > d:
                errs += 1
                if verbose:
                    print(f"[{name}] HAZARD need {n} have {d}: '{p.text}' -> '{c.text}'")
            d += p.states
            if d >= MAXD:
                break
        if c.cls == "wait":
            m = re.search(r"lgkmcnt\((\d+)\)", c.text)
            if m:
                n = int(m.group(1))
                if any(s for _, s in lg) and n > 0:
                    pass
                else:
                    lg = lg[len(lg) - n:] if n > 0 and len(lg) > n else ([] if n == 0 else lg)
            m = re.search(r"vmcnt\((\d+)\)", c.text)
            if m:
                n = int(m.group(1))
                vm = vm[len(vm) - n:] if n > 0 and len(vm) > n else ([] if n == 0 else vm)
            continue
        touch = set(c.r) | set(x for x in c.w if x[0] != "lds")
        for pend, nm in ((lg, "lgkm"), (vm, "vm")):
            for regs, _ in pend:
                if regs & touch:
                    errs += 1
                    if verbose:
                        print(f"[{name}] MISSING {nm} wait before '{c.text}' ({sorted(regs & touch)[:2]})")
                    break
        if c.cls == "ds":
            lg.append((set(c.w), False))
            if len(lg) > 15 and False:
                print(f"[{name}] warning lgkm overflow at {c.text}")
        elif c.cls == "smem":
            lg.append((set(c.w), True))
            if len(c.w) > 1:
                lg.append((set(), True))
        elif c.cls in ("vmem", "dma"):
            vm.append((set(c.w), False))
    return errs


def auto_wait(block, lg_in=None, vm_in=None):
    lg = [set(x) for x in (lg_in or [])]
    vm = [set(x) for x in (vm_in or [])]
    smem_pending = False
    smem_regs = set()
    out = []
    for c in block.ins:
        if c.states == 0:
            out.append(c)
            continue
        if c.cls == "wait":
            m = re.search(r"lgkmcnt\((\d+)\)", c.text)
            if m:
                n = int(m.group(1))
                if n == 0:
                    lg = []
                    smem_pending = False
                    smem_regs = set()
                elif not smem_pending and len(lg) > n:
                    lg = lg[len(lg) - n:]
            m = re.search(r"vmcnt\((\d+)\)", c.text)
            if m:
                n = int(m.group(1))
                vm = [] if n == 0 else (vm[len(vm) - n:] if len(vm) > n else vm)
            out.append(c)
            continue
        touch = set(c.r) | set(x for x in c.w if x[0] != "lds")
        wl = wv = None
        if smem_regs & touch:
            wl = 0
        for i, regs in enumerate(lg):
            if regs & touch:
                n = len(lg) - 1 - i
                if smem_pending:
                    n = 0
                n = min(n, 14)
                wl = n if wl is None else min(wl, n)
        for i, regs in enumerate(vm):
            if regs & touch:
                n = min(len(vm) - 1 - i, 62)
                wv = n if wv is None else min(wv, n)
        if wl is not None or wv is not None:
            s = "s_waitcnt"
            if wv is not None:
                s += f" vmcnt({wv})"
                vm = [] if wv == 0 else vm[len(vm) - wv:]
            if wl is not None:
                s += f" lgkmcnt({wl})"
                lg = [] if wl == 0 else lg[len(lg) - wl:]
                if wl == 0:
                    smem_pending = False
                    smem_regs = set()
            out.append(Ins(s))
        if c.cls == "ds":
            lg.append(set(c.w))
        elif c.cls == "smem":
            smem_pending = True
            smem_regs |= set(c.w)
        elif c.cls in ("vmem", "dma"):
            vm.append(set(c.w))
        out.append(c)
    block.ins = out
    return lg, vm


def interleave(mains, fillers):
    b = Block()
    for t in fillers.get(-1, []):
        b(t)
    for i, m in enumerate(mains):
        b(m)
        for t in fillers.get(i, []):
            b(t)
    return b


def kernel_header(name):
    return f".globl {name}\n.p2align 8\n.type {name},@function\n{name}:"


def kernel_desc(name, nvgpr, accum, nsgpr=102):
    return (
        f".p2align 6\n.amdhsa_kernel {name}\n"
        f"  .amdhsa_next_free_vgpr {nvgpr}\n  .amdhsa_next_free_sgpr {nsgpr}\n  .amdhsa_accum_offset {accum}\n"
        "  .amdhsa_group_segment_fixed_size 0\n  .amdhsa_kernarg_size 112\n  .amdhsa_user_sgpr_count 2\n"
        "  .amdhsa_user_sgpr_kernarg_segment_ptr 1\n  .amdhsa_system_sgpr_workgroup_id_x 1\n"
        "  .amdhsa_float_denorm_mode_32 3\n"
        ".end_amdhsa_kernel"
    )


class Sched:
    def __init__(self, mains, period):
        self.mains = mains
        self.period = period
        self.streams = []
        self.pre = []

    def add(self, items, maxper=99, over=0):
        self.streams.append([list(items), maxper, over])

    def build(self, slack=0):
        b = Block()
        for t in self.pre:
            b(t)
        n = len(self.mains)
        for g in range(n):
            b(self.mains[g])
            vec, non = [], []
            order = []

            def cost(vec, non):
                nt = sum(1 for v in vec if v.cls == "trans")
                return 8 + 8 * nt + 4 * (len(vec) - nt) + 4 * max(0, len(non) - 1 - nt)
            for st in self.streams:
                items, maxper, over = st
                k = 0
                while items and (g == n - 1 or (items[0][0] <= g and k < maxper)):
                    grp = [Ins(l.strip()) for l in items[0][1].split("\n") if l.strip()]
                    v2 = vec + [i for i in grp if i.is_valu()]
                    n2 = non + [i for i in grp if not i.is_valu()]
                    forced = len(items[0]) > 2 and items[0][2]
                    if g < n - 1 and not forced and cost(v2, n2) > self.period - slack + over and (vec or non):
                        break
                    vec, non = v2, n2
                    order.append(grp)
                    items.pop(0)
                    k += 1
            multi = [x for x in order if len(x) > 1]
            sn = [x[0] for x in order if len(x) == 1 and not x[0].is_valu()]
            sv = [x[0] for x in order if len(x) == 1 and x[0].is_valu()]
            out = []
            for x in multi:
                out += x
            if sn and not multi:
                out.append(sn.pop(0))
            for v in sv:
                out.append(v)
                if v.cls == "trans" and sn:
                    out.append(sn.pop(0))
            out += sn
            orig = [i for x in order for i in x]
            pos = {id(i): k for k, i in enumerate(out)}
            ok = True
            for a in range(len(orig)):
                for c in range(a + 1, len(orig)):
                    x, y = orig[a], orig[c]
                    if pos[id(x)] > pos[id(y)]:
                        dep = (set(x.w) & (set(y.r) | set(y.w))) or (set(x.r) & set(y.w))
                        sync = x.cls in ("wait", "ctl") or y.cls in ("wait", "ctl")
                        mem = ("ds", "vmem", "dma")
                        scc = x.cls == "salu" and y.cls == "salu"
                        if dep or scc or (sync and (x.cls in mem or y.cls in mem or (x.cls in ("wait", "ctl") and y.cls in ("wait", "ctl")))):
                            ok = False
            b.ins += out if ok else orig
        for st in self.streams:
            assert not st[0], ("unscheduled", st[0][:3])
        return b


def apply_stamps(blocks, name, sW, on, ka_dbg=96, base=72, nwg=16, stride=1, dbgoff=0):
    n = 0
    for b in blocks:
        out = []
        for i in b.ins:
            if i.text.strip() == "; stamp":
                if on:
                    if n == 0:
                        out.append(Ins(f"s_memrealtime s[96:97]"))
                    out.append(Ins(f"s_memtime s[{base + 2 * n}:{base + 2 * n + 1}]"))
                    n += 1
                continue
            if on and i.text.strip() == f"{name}_done:":
                d = Block()
                d(f"""s_waitcnt vmcnt(0)
                s_memtime s[{base + 2 * n}:{base + 2 * n + 1}]
                s_memrealtime s[98:99]
                s_load_dwordx2 s[4:5], s[0:1], {ka_dbg}
                s_waitcnt lgkmcnt(0)
                s_mov_b32 s6, 4096
                s_mov_b32 s7, 0x20000
                s_cmp_lg_u32 s{sW}, 0
                s_cbranch_scc1 {name}_done
                s_and_b32 s8, s2, {stride - 1}
                s_cmp_lg_u32 s8, 0
                s_cbranch_scc1 {name}_done
                s_lshr_b32 s8, s2, {stride.bit_length() - 1}
                s_cmp_ge_u32 s8, {nwg}
                s_cbranch_scc1 {name}_done
                s_lshl_b32 s8, s8, 6
                s_add_u32 s8, s8, {dbgoff}
                v_mov_b32 v1, 0
                s_sub_u32 s9, s98, s96
                v_mov_b32 v2, s9
                buffer_store_dword v2, v1, s[4:7], s8 offen""")
                for k in range(1, n + 1):
                    d(f"s_sub_u32 s9, s{base + 2 * k}, s{base}\nv_mov_b32 v2, s9\nbuffer_store_dword v2, v1, s[4:7], s8 offen offset:{4 * k}")
                out += d.ins
            out.append(i)
        b.ins = out
    assert base + 2 * n + 1 < 96
```

```python
from asmlib import *
from layout import *
from gen_k1 import MF16, ar, vr, ln_stream
import struct

MF = "v_mfma_f32_32x32x16_bf16"
QSCALE = 1.4426950408889634 / (128 ** 0.5)
fbits = lambda x: "0x%08x" % struct.unpack("<I", struct.pack("<f", x))[0]
S = lambda b: f"s[{b}:{b + 3}]"
SC = " sc1"

sWS, sCK, sUK, sUV, sXs, sDB, sWQ, sW1, sB1, sP = 4, 8, 12, 16, 20, 24, 28, 32, 36, 40
sW, sQh, sKh, sH, sG, sTmp, sTmp2, sOOB = range(44, 52)
sKn, sVn, sRem, sNext, sT2h, sKw, sVw, sCnt = range(52, 60)
sTh, sBlk, sCb, sCb2, sSl, sM0, sHo, sWk = range(60, 68)
sW1b, sAm, sAb, sTmp3 = range(68, 72)
sFl2 = 3
sWO, sW2 = 8, 12
sOW, sOW2, sOA, sOA2, sOkw, sOka, sPo, sOA13, sOfl, sTo, sOm = range(28, 39)
vFl2, vOneI, vOTr, vOD, vOAt, vOPo, vTch = 4, 9, 245, 247, 252, 254, 15
sSpin = 101
sRowX, sRowO, sStat = sKn, sVn, sRem
sKo = 20
vL16, vL16b, vL16v, vL16vb = 1, 12, 13, 14
vKa, vVa0, vVa1, vCo = 5, 6, 7, 8
vM = [10, 2]
vLs = [11, 3]
vF = [16, 18]
vT = 20
KB, VTOG, SCR = 0x10000, 0x20000, 0x8000


def dma_K(par):
    L = [f"s_add_u32 m0, s{sKw}, {par * 0x4000}"]
    for i in range(4):
        L.append(f"buffer_load_dwordx4 v{vL16b if par else vL16}, {S(sWS)}, s{sKn} offen offset:{i * 1024} sc1 lds")
    if par:
        L += [f"s_xor_b32 s{sKw}, s{sKw}, 0x8000", f"s_mov_b32 s{sVn}, s{sKn}", f"s_add_u32 s{sKn}, s{sKn}, 0x8000",
              f"s_sub_u32 s{sRem}, s{sRem}, 1", f"s_cmp_eq_u32 s{sRem}, 0",
              f"s_cselect_b32 s{sKn}, s{sNext}, s{sKn}", f"s_cselect_b32 s{sRem}, s{sT2h}, s{sRem}", f"s_cselect_b32 s{sNext}, s{sOOB}, s{sNext}"]
    return L


def dma_V(par):
    L = [f"s_add_u32 m0, s{sVw}, {par * 0x4000}"]
    for i in range(4):
        L.append(f"buffer_load_dwordx4 v{vL16vb if par else vL16v}, {S(sWS)}, s{sVn} offen offset:{i * 1024} sc1 lds")
    if par:
        L.append(f"s_xor_b32 s{sVw}, s{sVw}, {VTOG}")
    return L


SLOW = []


def poll_check(name, tag, vP, vPo, srd_, soff, expect, mask):
    ld = f"buffer_load_dword v{vP}, v{vPo}, {S(srd_)}, {soff} offen sc1"
    chk = (f"v_cmp_eq_u32 vcc, {expect}, v{vP}\ns_nop 1\ns_and_b32 s{sTmp3}, vcc_lo, {mask}\ns_cmp_eq_u32 s{sTmp3}, {mask}\n"
           f"s_cbranch_scc0 {name}_slow_{tag}\n{name}_back_{tag}:")
    SLOW.append(f"""{name}_slow_{tag}:
    s_mov_b32 s{sSpin}, 50000
{name}_spin_{tag}:
    s_sleep 4
    {ld}
    s_waitcnt vmcnt(0)
    v_cmp_eq_u32 vcc, {expect}, v{vP}
    s_nop 1
    s_and_b32 s{sTmp3}, vcc_lo, {mask}
    s_cmp_eq_u32 s{sTmp3}, {mask}
    s_cbranch_scc1 {name}_back_{tag}
    s_sub_u32 s{sSpin}, s{sSpin}, 1
    s_cmp_lg_u32 s{sSpin}, 0
    s_cbranch_scc1 {name}_spin_{tag}
    s_branch {name}_back_{tag}""")
    return ld, chk


def verify_front(b):
    ins = [i for i in b.ins if i.states]
    idx = lambda pred: [k for k, i in enumerate(ins) if pred(i)]
    for tag in ("ln", "kv"):
        w = idx(lambda i: ("lds", tag) in i.w)
        r = idx(lambda i: ("lds", tag) in i.r)
        assert w and len(r) == 1 and max(w) < r[0], (tag, max(w), r)
    defd = {("v", 0), ("s", 0), ("s", 1), ("s", 2), ("exec", 0), ("exec", 1)}
    for i in ins:
        for r in i.r:
            if r[0] in "vas" and r not in defd:
                print("UNDEF", r, i.text)
        defd |= set(i.w)
    last = {}
    for k, i in enumerate(ins):
        if i.op == "v_accvgpr_read_b32" or (i.op == "v_cvt_pk_bf16_f32" and k > len(ins) // 3):
            for r in i.r:
                p = last[r]
                if p.cls == "mfma":
                    nxt = next((j for j in ins[k:] if r in j.w), None)
                    assert not (nxt is not None and nxt.cls == "mfma" and r in nxt.srcc), ("early read", i.text)
                    assert r in p.srcc, ("read of fresh acc", i.text, p.text)
        if ("lds", "kv") in i.w:
            for r in i.data:
                assert last[r].op == "v_cvt_pk_bf16_f32", (i.text, last[r].text)
            so = [r for r in i.r if r[0] == "s" and r[1] >= 44][0]
            assert ins.index(last[so]) < 400, (i.text, last[so].text)
        if "offen sc1" in i.text and i.op == "buffer_load_dwordx4" and i.cls != "dma":
            assert last[("s", sTmp2)].op == "s_mov_b32", i.text
        for r in i.w:
            last[r] = i
    print("front verified,", len(ins), "instrs")


def gen_front(name, bgap=44, bgap1=30, st_last=15, ln0=1, touch1=7, touch2=8, inv=False, lnmode=0, fine=None, nostore=False, xsc=True):
    NS, NS1, R, G1, NF1, PF = 16, 20, 4, 49, 13, 4
    WF = lambda f: 4 * (f % 8)
    AF = lambda ks, tt: 32 + 16 * (ks % 2) + 4 * tt
    XF = lambda ks, tt: 128 + 16 * (ks % 4) + 4 * tt

    def ACC(part, nt, tt):
        if part == 1:
            return ("v", 128 + 16 * nt + 4 * tt)
        return ("v", 64 + 16 * nt + 4 * tt) if nt < 4 else ("a", 64 + 16 * (nt - 4) + 4 * tt)
    rs = lambda x: "%s[%d:%d]" % (x[0], x[1], x[1] + 3)
    QA = lambda nt, tt: (192 + 16 * nt + 4 * tt) if nt < 4 else (64 + 16 * (nt - 4) + 4 * tt)
    HA = lambda ft, tt: 128 + 8 * (ft * 4 + tt) + 4
    vTr, vD, vD2, vAd, vAr, vSK, vSV, vFl, vPo = 2, 10, 11, 12, 14, 16, 17, 18, 19
    vX, vLT, vOffX, vOffS = 22, 32, 57, 58
    vTr1, vTrC, vD1, vAt, vQw, vOne, vCS, vStg = 32, 36, 37, 40, 38, 44, 48, 52
    sKo = [sNext, sT2h, sKw, sVw]

    b = Block("front")
    b(f"""
    s_cmp_ge_u32 s2, 256
    s_cbranch_scc1 {name}_done
    ; stamp
    s_load_dwordx2 s[{sCK}:{sCK + 1}], s[0:1], {KA_CKV}
    s_load_dwordx2 s[{sUK}:{sUK + 1}], s[0:1], {KA_WUK}
    s_load_dwordx2 s[{sUV}:{sUV + 1}], s[0:1], {KA_WUV}
    s_load_dwordx2 s[{sXs}:{sXs + 1}], s[0:1], {KA_X}
    s_load_dwordx2 s[{sWS}:{sWS + 1}], s[0:1], {KA_WS}
    s_load_dwordx2 s[{sDB}:{sDB + 1}], s[0:1], {KA_DBG}
    s_load_dwordx2 s[{sWQ}:{sWQ + 1}], s[0:1], {KA_WQ}
    s_load_dwordx2 s[{sW1}:{sW1 + 1}], s[0:1], {KA_W1}
    s_load_dwordx2 s[{sB1}:{sB1 + 1}], s[0:1], {KA_B1}
    v_lshrrev_b32 v1, 6, v0
    v_and_b32 v0, 63, v0
    v_readfirstlane_b32 s{sW}, v1
    v_lshlrev_b32 v{vL16}, 4, v0
    """)
    for s_, sz in ((sCK, S_ * DC * 2), (sUK, DC * 8192), (sUV, DC * 8192), (sXs, S_ * M * 2), (sWS, WS_USED), (sDB, 256),
                   (sWQ, M * 8192), (sW1, M * F * 2), (sB1, F * 2)):
        b(f"s_mov_b32 s{s_ + 2}, {sz}\ns_mov_b32 s{s_ + 3}, 0x20000")
    b(f"""
    s_mov_b32 s{sOOB}, 0x40000000
    s_and_b32 s{sH}, s2, 7
    s_lshr_b32 s{sTmp}, s2, 6
    s_lshl_b32 s{sSl}, s{sTmp}, 3
    s_add_u32 s{sSl}, s{sSl}, s{sH}
    s_lshl_b32 s{sH}, s{sH}, 2
    s_add_u32 s{sH}, s{sH}, s{sTmp}
    s_bfe_u32 s{sG}, s2, 0x30003
    s_and_b32 s{sQh}, s{sW}, 1
    s_lshr_b32 s{sKh}, s{sW}, 1
    v_and_b32 v20, 15, v0
    v_lshrrev_b32 v21, 4, v0
    s_lshl_b32 s{sTmp}, s{sQh}, 2
    v_or_b32 v26, s{sTmp}, v21
    v_lshlrev_b32 v26, 1, v26
    v_xor_b32 v26, v26, v20
    v_lshlrev_b32 v26, 4, v26
    v_lshl_add_u32 v{vD}, v21, 13, v26
    v_add_u32 v{vD2}, {4 * 8192}, v{vD}
    v_lshrrev_b32 v26, 3, v0
    v_and_b32 v27, 7, v0
    v_xor_b32 v27, v27, v21
    v_lshlrev_b32 v27, 4, v27
    v_lshl_add_u32 v{vAd}, v26, 10, v27
    v_xor_b32 v{vAd + 1}, 64, v{vAd}
    s_lshl_b32 s{sTmp}, s{sG}, 8
    s_lshl_b32 s{sTmp2}, s{sW}, 6
    s_add_u32 s{sTmp}, s{sTmp}, s{sTmp2}
    s_lshl_b32 s{sAb}, s{sTmp}, 10
    s_lshl_b32 s{sKo[0]}, s{sTmp}, 8
    s_lshl_b32 s{sWk}, s{sH}, 8
    s_lshl_b32 s{sTmp2}, s{sW}, 16
    s_add_u32 s{sWk}, s{sWk}, s{sTmp2}
    s_lshl_b32 s{sM0}, s{sW}, 10
    s_lshl_b32 s{sCnt}, s{sW}, 11
    s_mul_i32 s{sAm}, s{sW}, 24576
    s_add_u32 s{sAm}, s{sAm}, 65536
    s_waitcnt lgkmcnt(0)
    """)
    sM2 = sCnt

    def dma(u):
        base = (u % R) * 16384
        L = []
        if u < NS:
            for part in range(2):
                for i in range(2):
                    L.append(f"s_add_u32 m0, s{sM2}, {base + part * 8192 + i * 1024}\ns_add_u32 s{sTmp}, s{sWk}, {u * 32 * 8192}\n"
                             f"buffer_load_dwordx4 v{vD if i == 0 else vD2}, {S(sUK if part == 0 else sUV)}, s{sTmp} offen lds ; W:w{u}")
        else:
            k = u - NS
            for i in range(2):
                L.append(f"s_add_u32 m0, s{sM2}, {base + i * 1024}\ns_add_u32 s{sTmp}, s{sWk}, {k * 32 * 8192}\n"
                         f"buffer_load_dwordx4 v{vD if i == 0 else vD2}, {S(sWQ)}, s{sTmp} offen lds ; W:w{u}")
            L.append(f"s_add_u32 m0, s{sM0}, {base + 8192}\ns_add_u32 s{sTmp}, s{sW1b}, {k * 32 * 3456}\n"
                     f"buffer_load_dwordx4 v{vD1}, {S(sW1)}, s{sTmp} offen lds ; W:w{u}")
        return L

    def actd(p):
        L = []
        for j in range(8):
            tt = j // 2
            tok = 32 * (tt // 2) + 8 * (tt % 2) + 16 * (j % 2)
            L.append(f"s_add_u32 m0, s{sAm}, {(p % 3) * 8192 + j * 1024}\ns_add_u32 s{sTmp}, s{sAb}, {tok * 1024 + p * 128}\n"
                     f"buffer_load_dwordx4 v{vAd + j % 2}, {S(sCK)}, s{sTmp} offen lds ; W:a{p}")
        return L

    for t in dma(0) + actd(0) + dma(1):
        b(t)
    b(f"""
    v_and_b32 v24, 31, v0
    v_lshrrev_b32 v25, 5, v0
    v_mul_u32_u24 v26, 1280, v25
    v_lshl_add_u32 v{vOffX}, v24, 3, v26
    v_lshrrev_b32 v26, 1, v24
    v_lshlrev_b32 v26, 8, v26
    v_and_b32 v27, 1, v24
    v_lshl_add_u32 v26, v27, 3, v26
    v_lshl_add_u32 v{vOffS}, v25, 4, v26
    s_lshl_b32 s{sTmp}, s2, 3
    s_lshl_b32 s{sTmp2}, s{sW}, 1
    s_add_u32 s{sStat}, s{sTmp}, s{sTmp2}
    s_mul_i32 s{sRowX}, s{sStat}, 1280
    v_and_b32 v22, 7, v20
    v_and_b32 v23, 8, v20
    v_lshl_add_u32 v22, v23, 1, v22
    v_lshrrev_b32 v26, 2, v20
    v_lshl_add_u32 v27, v21, 3, v26
    v_lshlrev_b32 v27, 8, v27
    v_and_b32 v28, 3, v20
    v_lshl_add_u32 v27, v28, 3, v27
    v_and_b32 v28, 1, v21
    v_lshl_or_b32 v28, v28, 2, v26
    """)
    for nt in range(8):
        b(f"v_xor_b32 v29, {nt}, v28\nv_lshl_add_u32 v{vTr + nt}, v29, 5, v27")
    b(f"""
    v_lshlrev_b32 v26, 9, v21
    v_lshl_add_u32 v{vSK}, v22, 4, v26
    v_lshl_add_u32 v{vSV}, v20, 4, v26
    v_add_u32 v{vSV}, {VF_OFF - KF_OFF}, v{vSV}
    v_lshrrev_b32 v26, 1, v20
    v_xor_b32 v26, v26, v21
    v_lshlrev_b32 v26, 4, v26
    v_lshl_add_u32 v26, v20, 7, v26
    v_add_u32 v{vAr}, s{sAm}, v26
    v_xor_b32 v{vAr + 1}, 64, v{vAr}
    s_lshr_b32 s{sTmp2}, s{sStat}, 4
    s_mul_i32 s{sRowO}, s{sTmp2}, 20480
    s_and_b32 s{sTmp2}, s{sStat}, 15
    s_lshl_b32 s{sTmp2}, s{sTmp2}, 4
    s_add_u32 s{sRowO}, s{sRowO}, s{sTmp2}
    s_lshl_b32 s{sStat}, s{sStat}, 3
    s_add_u32 s{sStat}, s{sStat}, {ST_OFF}
    s_lshl_b32 s{sTmp2}, s{sH}, 19
    s_add_u32 s{sKo[0]}, s{sKo[0]}, s{sTmp2}
    s_add_u32 s{sKo[0]}, s{sKo[0]}, {KF_OFF}
    s_add_u32 s{sKo[1]}, s{sKo[0]}, 4096
    s_add_u32 s{sKo[2]}, s{sKo[0]}, 8192
    s_add_u32 s{sKo[3]}, s{sKo[0]}, 12288
    v_or_b32 v26, s{sW}, v0
    v_cmp_eq_u32 vcc, 0, v26
    v_mov_b32 v27, s{sOOB}
    v_cndmask_b32 v{vFl}, v27, 0, vcc
    s_lshl_b32 s{sTh}, s{sH}, 7
    s_lshl_b32 s{sTmp}, s{sG}, 2
    s_add_u32 s{sTh}, s{sTh}, s{sTmp}
    s_add_u32 s{sTh}, s{sTh}, {FL_OFF}
    v_mov_b32 v60, 0
    v_mov_b32 v61, 1
    s_lshl_b32 s{sFl2}, s{sG}, 9
    s_lshl_b32 s{sTmp}, s{sH}, 2
    s_add_u32 s{sFl2}, s{sFl2}, s{sTmp}
    s_add_u32 s{sFl2}, s{sFl2}, {FL2_OFF}
    """)
    zf = [f"buffer_store_dword v60, v{vFl}, {S(sWS)}, s{sFl2} offen offset:{128 * i} sc1 ; W:ln" for i in range(3)]
    assert XN_OFF == 0
    ln_loads, ln_ops = ln_stream(vX, vLT, vOffX, vOffS, S(sXs), S(sWS), sRowX, sRowO, sStat)
    ln_ops = [t + ((SC if lnmode == 0 else "") + " ; W:ln" if "buffer_store" in t else "") for t in ln_ops]
    if lnmode == 2:
        ln_ops = [t for t in ln_ops if "buffer_store" not in t]
    if lnmode == 3:
        ln_ops = []
    for t in ln_loads + [f"buffer_store_dword v60, v{vFl}, {S(sWS)}, s{sTh} offen sc1 ; W:ln"] + dma(2) + zf:
        b(t)

    def trrd(u, f, dst):
        off = (u % R) * 16384
        if u < NS:
            reg, off, d = vTr + f % 8, off + (f // 8) * 8192, 1024
        elif f < 8:
            reg, d = vTr + f, 1024
        elif f < 12:
            reg, d = vTr1 + f - 8, 512
        else:
            reg, d = vTrC, 512
        return [f"ds_read_b64_tr_b16 a[{dst}:{dst + 1}], v{reg} offset:{off}",
                f"ds_read_b64_tr_b16 a[{dst + 2}:{dst + 3}], v{reg} offset:{off + d}"]

    def actrd(st, tt):
        return f"ds_read_b128 {ar(AF(st, tt))}, v{vAr + st % 2} offset:{((st // 2) % 3) * 8192 + tt * 2048} ; R:a{st // 2}"

    b("; stamp\ns_barrier ; R:w0")
    for tt in range(4):
        b(actrd(0, tt))
    for f in range(PF):
        for t in trrd(0, f, WF(f)):
            b(t)

    mains, frs, g0s = [], [], []
    for u in range(NS + NS1):
        g0s.append(len(mains))
        for f in range(16 if u < NS else NF1):
            w = ar(WF(len(frs)))
            frs.append((u, f, len(mains)))
            if u < NS:
                part, nt = f // 8, f % 8
                for tt in range(4):
                    a = rs(ACC(part, nt, tt))
                    x, y = (w, ar(AF(u, tt))) if part == 0 else (ar(AF(u, tt)), w)
                    mains.append(f"{MF16} {a}, {x}, {y}, {a if u else '0'}")
            elif f == 12:
                mains.append(f"{MF16} {vr(vCS)}, {w}, {vr(vOne)}, {vr(vCS) if u > NS else '0'}")
            else:
                for tt in range(4):
                    a = ar(QA(f, tt)) if f < 8 else vr(HA(f - 8, tt))
                    mains.append(f"{MF16} {a}, {w}, {ar(XF(u - NS, tt))}, {a if u > NS else '0'}")
    NU = NS + NS1
    bg = lambda u: g0s[u] + (bgap if u < NS else bgap1)
    sc = Sched(mains, 16)
    sync, rd, ard = [], [], []
    for u in range(NU - 1):
        tag = f"R:w{u + 1}" + (" R:ln" if u == 9 else "") + (" R:kv" if u == NS + st_last + 3 else "")
        sync.append((bg(u), f"s_barrier ; {tag}", True))
        if u == 9:
            sync.append((bg(u) + 2, f"s_and_b32 s{sTmp}, s2, 7\ns_lshl_b32 s{sTmp}, s{sTmp}, 5\nbuffer_atomic_add v61, v{vFl}, {S(sDB)}, s{sTmp} offen sc1"))
        if u == NS + st_last + 3:
            sync.append((bg(u) + 2, f"buffer_store_dword v61, v{vFl}, {S(sWS)}, s{sTh} offen sc1"))
        if u + 1 < NS:
            for tt in range(4):
                ard.append((g0s[u] + 34 + 4 * tt, actrd(u + 1, tt), True))
    for i, (u, f, g) in enumerate(frs):
        if i + PF < len(frs):
            u2, f2, _ = frs[i + PF]
            assert u2 == u or g > bg(u)
            r = trrd(u2, f2, WF(i + PF))
            rd.append((g, r[0], True))
            rd.append((g + (0 if (u >= NS and f == 12) else 1), r[1], True))
    ev = []
    for u in range(3, NU):
        g = 2 if u < R else bg(u - 3) + 2
        sp = 16 if u - 3 < NS else 14
        for k, t in enumerate(dma(u)):
            ev.append((g + sp * k, t))
    eva = []
    for p in range(1, 8):
        g = {1: 6, 2: 70}.get(p, (2 * (p - 3) + 1) * 64 + 6)
        for k, t in enumerate(actd(p)):
            eva.append((g + (7 if p < 3 else 15) * k, t))
    ld, chk = poll_check(name, "ln", 62, vPo, sDB, "0", 32, 0xff)
    eva.append((g0s[11] + 10, f"v_lshlrev_b32 v{vPo}, 5, v0"))
    eva.append((g0s[12] + 10, ld))
    eva.append((g0s[13] + 10, chk, True))
    for k in range(NS1):
        u = NS + k - 3
        for tt in range(4):
            so = f"s_mov_b32 s{sTmp2}, {k * 1024}\n" if tt == 0 else ""
            eva.append((g0s[u] + (14 if u < NS else 6) + 11 * tt, so + f"buffer_load_dwordx4 {ar(XF(k, tt))}, v{vAt + tt}, {S(sWS)}, s{sTmp2} offen{SC if xsc else ''}"))
    sc.add(sync)
    sc.add(rd)
    sc.add(ard)
    sc.add(ev, maxper=1)
    sc.add(eva, maxper=1)
    misc = [(g0s[ln0], t) for t in ln_ops]
    g = g0s[10]
    setup = f"""v_lshrrev_b32 v24, 3, v0
    v_bfe_u32 v25, v0, 4, 1
    s_lshl_b32 s{sTmp2}, s{sQh}, 2
    v_or_b32 v25, s{sTmp2}, v25
    v_and_b32 v26, 7, v0
    v_xor_b32 v25, v25, v26
    v_mul_u32_u24 v24, 3456, v24
    v_lshl_add_u32 v{vD1}, v25, 4, v24
    v_lshrrev_b32 v24, 2, v20
    v_lshl_add_u32 v25, v21, 3, v24
    v_lshlrev_b32 v27, 7, v25
    v_and_b32 v30, 1, v20
    v_lshl_add_u32 v27, v30, 3, v27
    v_add_u32 v27, 8192, v27
    v_and_b32 v28, 1, v21
    v_bfe_u32 v29, v20, 3, 1
    v_lshl_or_b32 v29, v28, 2, v29
    v_and_b32 v30, 2, v20
    v_xor_b32 v29, v29, v30
    v_lshl_add_u32 v{vTr1}, v29, 4, v27
    v_xor_b32 v30, 1, v29
    v_lshl_add_u32 v{vTr1 + 1}, v30, 4, v27
    v_xor_b32 v30, 4, v29
    v_lshl_add_u32 v{vTr1 + 2}, v30, 4, v27
    v_xor_b32 v30, 5, v29
    v_lshl_add_u32 v{vTr1 + 3}, v30, 4, v27
    s_lshl_b32 s{sTmp2}, s{sKh}, 2
    s_or_b32 s{sTmp2}, s{sTmp2}, s{sQh}
    v_xor_b32 v30, s{sTmp2}, v29
    v_lshl_add_u32 v{vTrC}, v30, 4, v27
    s_sub_u32 s{sHo}, 15, s{sG}
    s_cmp_eq_u32 s{sKh}, 0|s_cselect_b32 s{sHo}, s{sHo}, s{sG}
    s_lshl_b32 s{sHo}, s{sHo}, 3
    s_lshl_b32 s{sTmp2}, s{sQh}, 1
    s_add_u32 s{sHo}, s{sHo}, s{sTmp2}
    s_mul_i32 s{sTmp2}, s{sHo}, 20480
    v_add_u32 v{vAt}, s{sTmp2}, v{vL16}
    v_add_u32 v{vAt + 1}, 20480, v{vAt}
    v_add_u32 v{vAt + 2}, {4 * 20480}, v{vAt}
    v_add_u32 v{vAt + 3}, {5 * 20480}, v{vAt}
    s_lshl_b32 s{sW1b}, s{sSl}, 7
    s_mul_i32 s{sTmp2}, s{sW}, {8 * 3456}
    s_add_u32 s{sW1b}, s{sW1b}, s{sTmp2}
    s_cmp_lt_u32 s{sSl}, 27|s_cselect_b32 s{sW1b}, s{sW1b}, s{sOOB}
    s_lshl_b32 s{sTmp2}, s{sW}, 14
    v_lshlrev_b32 v24, 9, v21
    v_lshl_add_u32 v24, v20, 4, v24
    v_add_u32 v{vQw}, s{sTmp2}, v24
    v_mov_b32 v{vOne}, 0x3f803f80
    v_mov_b32 v{vOne + 1}, 0x3f803f80
    v_mov_b32 v{vOne + 2}, 0x3f803f80
    v_mov_b32 v{vOne + 3}, 0x3f803f80"""
    misc += [(g, l.strip().replace("|", "\n")) for l in setup.split("\n")]
    sc.add(misc, maxper=1)
    tl = []
    if touch1 is not None:
        g = g0s[1] + 50
        tl.append((g, f"s_lshr_b32 s{sCb}, s2, 3\ns_lshl_b32 s{sCb}, s{sCb}, 2\ns_add_u32 s{sCb}, s{sCb}, s{sW}"))
        tl.append((g, f"s_mul_i32 s{sCb}, s{sCb}, {5 * 8192}\ns_and_b32 s{sCb2}, s2, 7\ns_lshl_b32 s{sCb2}, s{sCb2}, 10"))
        tl.append((g, f"v_min_u32 v59, 8, v0\nv_lshlrev_b32 v59, 7, v59"))
        tl.append((g, f"v_min_u32 v62, 0x380, v59\ns_add_u32 s{sCb}, s{sCb}, s{sCb2}"))
        tl.append((g, f"s_lshl_b32 s{sCb2}, s2, 2\ns_add_u32 s{sCb2}, s{sCb2}, s{sW}\ns_mul_i32 s{sCb2}, s{sCb2}, {17 * 128}"))
        for k in range(5):
            tl.append((g0s[2 + k] + 50, f"buffer_load_dword a255, v62, {S(sWQ)}, s{sCb} offen\ns_add_u32 s{sCb}, s{sCb}, 8192"))
        for k in range(2):
            tl.append((g0s[7 + k] + 50, f"buffer_load_dword a255, v59, {S(sW1)}, s{sCb2} offen offset:{k * 1024}"))
        sc.add(tl, maxper=1)
    ep, sts = [], []
    g0 = g0s[NS - 1]
    LAG = 6

    def cv(d, x, y, gap):
        ep.append((gap, f"v_cvt_pk_bf16_f32 v{d}, v{x}, v{x + 1}"))
        ep.append((gap, f"v_cvt_pk_bf16_f32 v{d + 1}, v{x + 2}, v{x + 3}"))
        ep.append((gap, f"v_cvt_pk_bf16_f32 v{d + 2}, v{y}, v{y + 1}"))
        ep.append((gap, f"v_cvt_pk_bf16_f32 v{d + 3}, v{y + 2}, v{y + 3}"))
    for m in range(4):
        for tt in range(4):
            gap = g0 + (2 * m + 1) * 4 + tt + LAG
            x, y = ACC(0, 2 * m, tt)[1], ACC(0, 2 * m + 1, tt)[1]
            if m < 2:
                d = x
            else:
                d = ACC(0, 2 * (m - 2) + 1, tt)[1]
                stg = vStg if tt % 2 == 0 else 22
                for r in range(4):
                    ep.append((gap, f"v_accvgpr_read_b32 v{stg + r}, a{x + r}"))
                for r in range(4):
                    ep.append((gap, f"v_accvgpr_read_b32 v{stg + 4 + r}, a{y + r}"))
                x, y = stg, stg + 4
            cv(d, x, y, gap)
            off = (tt // 2) * 8192 + m * 2048 + (tt % 2) * 128
            sts.append(f"buffer_store_dwordx4 {vr(d)}, v{vSK}, {S(sWS)}, s{sKo[off // 4096]} offen offset:{off % 4096}{SC} ; W:kv")
    for nt in range(8):
        for a in range(2):
            gap = g0 + 32 + nt * 4 + 2 * a + 1 + LAG
            x, y = ACC(1, nt, 2 * a)[1], ACC(1, nt, 2 * a + 1)[1]
            cv(x, x, y, gap)
            off = a * 8192 + (nt // 2) * 2048 + (nt % 2) * 256
            sts.append(f"buffer_store_dwordx4 {vr(x)}, v{vSV}, {S(sWS)}, s{sKo[off // 4096]} offen offset:{off % 4096}{SC} ; W:kv")
    sc.add(ep, over=4)
    ga, gb = g0 + 40, g0s[NS + st_last] + 40
    if nostore:
        sts = sts[:1]
    sc.add([(ga + (gb - ga) * k // 31, t) for k, t in enumerate(sts)], maxper=1)
    late = []
    g = g0s[NS + 17] + 4
    late.append((g, f"s_lshl_b32 s{sTmp2}, s{sHo}, 7\ns_add_u32 s{sTmp2}, s{sTmp2}, {ST_OFF}\nv_lshlrev_b32 v30, 3, v20"))
    for tt in range(4):
        late.append((g + 4, f"buffer_load_dwordx2 v[{22 + 2 * tt}:{23 + 2 * tt}], v30, {S(sWS)}, s{sTmp2} offen offset:{[0, 128, 512, 640][tt]}{SC}"))
    late.append((g + 20, f"v_lshrrev_b32 v31, 1, v21\nv_lshlrev_b32 v31, 5, v31"))
    late.append((g + 20, f"v_and_b32 v30, 1, v21\nv_lshl_add_u32 v31, v30, 3, v31\ns_lshl_b32 s{sTmp2}, s{sSl}, 7"))
    for ft in range(4):
        late.append((g + 24, f"buffer_load_dwordx2 v[{52 + 2 * ft}:{53 + 2 * ft}], v31, {S(sB1)}, s{sTmp2} offen offset:{(ft // 2) * 64 + (ft % 2) * 16}"))
    aset = f"""v_add_u32 v{vL16b}, 0x4000, v{vL16}
    v_add_u32 v{vL16v}, {VF_OFF - KF_OFF}, v{vL16}
    v_add_u32 v{vL16vb}, {VF_OFF - KF_OFF + 0x4000}, v{vL16}
    s_add_u32 s{sT2h}, s{sG}, 1
    s_sub_u32 s{sRem}, 17, s{sT2h}
    s_lshl_b32 s{sKn}, s{sH}, 19
    s_lshl_b32 s{sKw}, s{sW}, 12
    s_add_u32 s{sKn}, s{sKn}, s{sKw}
    s_add_u32 s{sKn}, s{sKn}, {KF_OFF}
    s_mov_b32 s{sNext}, s{sKn}
    s_or_b32 s{sVw}, s{sKw}, {VTOG}
    s_or_b32 s{sKw}, s{sKw}, {KB}
    s_mov_b32 s{sBlk}, 0
    s_lshl_b32 s{sCb}, s{sH}, 12
    s_lshl_b32 s{sTmp2}, s{sKh}, 11
    s_add_u32 s{sCb}, s{sCb}, s{sTmp2}
    s_mul_i32 s{sTmp2}, s{sQh}, {2 * AF_TT}
    s_add_u32 s{sCb}, s{sCb}, s{sTmp2}
    s_add_u32 s{sCb}, s{sCb}, {AF_OFF}
    s_mul_i32 s{sTmp2}, s{sG}, {8 * AF_TT}
    s_add_u32 s{sCb2}, s{sCb}, s{sTmp2}
    s_add_u32 s{sCb}, s{sCb}, {15 * 8 * AF_TT}
    s_sub_u32 s{sCb}, s{sCb}, s{sTmp2}
    s_mov_b32 s{sAm}, {fbits(QSCALE)}
    v_lshlrev_b32 v{vPo}, 2, v0
    s_lshl_b32 s{sAb}, s{sH}, 7
    s_add_u32 s{sAb}, s{sAb}, {FL_OFF}"""
    late += [(g0s[NS + 18], l.strip()) for l in aset.split("\n")]
    sc.add(late, maxper=1)
    ep = []
    g0 = g0s[NU - 1]
    k = 0
    for m in range(4):
        for tt in range(4):
            gap = g0 + (2 * m + 1) * 4 + tt + 6
            x, y = QA(2 * m, tt), QA(2 * m + 1, tt)
            s1, s2 = 128 + 8 * ((2 * k) % 16), 128 + 8 * ((2 * k + 1) % 16)
            for r in range(4):
                ep.append((gap, f"v_accvgpr_read_b32 v{s1 + r}, a{x + r}"))
            for r in range(4):
                ep.append((gap, f"v_accvgpr_read_b32 v{s2 + r}, a{y + r}"))
            for r in range(4):
                ep.append((gap, f"v_mul_f32 v{s1 + r}, s{sAm}, v{s1 + r}"))
            for r in range(4):
                ep.append((gap, f"v_mul_f32 v{s2 + r}, s{sAm}, v{s2 + r}"))
            cv(64 + 4 * k, s1, s2, gap)
            k += 1
    ld, chk = poll_check(name, "kv", 62, vPo, sWS, f"s{sAb}", 1, 0xff)
    ep.insert(len(ep) - 60, (g0, ld))
    sc.add(ep)
    body = sc.build()
    cnt = 0
    for i in body.ins:
        if i.cls == "mfma":
            if cnt in ([g0s[x] for x in fine] if fine else (g0s[4], g0s[NS], g0s[NS + 18])):
                b("; stampF" if fine else "; stamp")
            cnt += 1
        b.ins.append(i)
    verify_front(b)
    b("; stamp")
    b("s_barrier")
    k = 0
    for m in range(4):
        for tt in range(4):
            b(f"ds_write_b128 v{vQw}, {vr(64 + 4 * k)} offset:{((tt // 2) * 8 + 2 * m) * 1024 + (tt % 2) * 256}")
            k += 1
    b(f"v_add_u32 v30, s{sM0}, v{vL16}\nv_add_u32 v30, {KB}, v30\nds_write_b128 v30, {vr(vCS)} offset:0xc000")
    b(chk)
    if inv:
        b("buffer_inv sc1 ; W:inv")
    for ft in range(4):
        b(f"v_lshlrev_b32 v{32 + 4 * ft}, 16, v{52 + 2 * ft}\nv_and_b32 v{33 + 4 * ft}, 0xffff0000, v{52 + 2 * ft}\n"
          f"v_lshlrev_b32 v{34 + 4 * ft}, 16, v{53 + 2 * ft}\nv_and_b32 v{35 + 4 * ft}, 0xffff0000, v{53 + 2 * ft}")
    c0 = -2.0 * 0.7978845608028654 * 1.4426950408889634
    b(f"""
    s_load_dwordx2 s[{sWO}:{sWO + 1}], s[0:1], {KA_WO}
    s_load_dwordx2 s[{sW2}:{sW2 + 1}], s[0:1], {KA_W2}
    s_mov_b32 s{sWO + 2}, {4096 * 1280}
    s_mov_b32 s{sW2 + 2}, {F * 1280}
    v_mov_b32 v4, v{vFl}
    s_mov_b32 s{sTh}, s{sRem}
    s_mul_i32 s{sHo}, s{sHo}, {AF_TT}
    s_lshl_b32 s{sTmp}, s{sSl}, 11
    s_add_u32 s{sHo}, s{sHo}, s{sTmp}
    s_add_u32 s{sHo}, s{sHo}, {AF_OFF + 128 * 1024}
    s_lshl_b32 s{sTmp}, s{sQh}, 14
    v_add_u32 v31, s{sTmp}, v{vL16}
    v_add_u32 v30, {KB}, v{vL16}
    s_lshl_b32 s{sTmp}, s{sKh}, 13
    s_or_b32 s{sTmp}, s{sTmp}, {KB + 0x8000}
    v_add_u32 v{vKa}, s{sTmp}, v{vL16}
    s_mul_i32 s{sTmp2}, s{sKh}, 0x3000
    v_add_u32 v{vVa0}, s{sTmp2}, v{vL16}
    s_lshl_b32 s{sTmp2}, s{sKh}, 12
    s_add_u32 s{sTmp2}, s{sTmp2}, 0x1000
    v_add_u32 v{vVa1}, s{sTmp2}, v{vL16}
    v_bfe_u32 v15, v0, 4, 1
    v_mul_u32_u24 v15, {AF_TT}, v15
    v_lshrrev_b32 v9, 5, v0
    v_lshl_add_u32 v15, v9, 8, v15
    v_lshl_add_u32 v{vCo}, v20, 4, v15
    s_waitcnt lgkmcnt(0)
    s_barrier ; R:inv
    v_mov_b32 v64, {fbits(c0)}
    v_mov_b32 v65, {fbits(c0 * 0.044715)}
    v_mov_b32 v66, 1.0
    """)
    for ft in range(4):
        b(f"ds_read_b128 {vr(48 + 4 * ft)}, v30 offset:{0xc000 + ft * 1024}")
    for f in range(10):
        b(f"ds_read_b128 {ar(64 + 4 * f)}, v31 offset:{f * 1024}")
    for t in dma_K(0) + dma_K(1):
        b(t)
    b("s_waitcnt lgkmcnt(8)")
    for f in range(10, 16):
        b(f"ds_read_b128 {ar(64 + 4 * f)}, v31 offset:{f * 1024}")
    for t in dma_V(0) + dma_K(0) + dma_V(1):
        b(t)
    b("; stamp")
    b(f"s_cmp_ge_u32 s{sSl}, 27\ns_cselect_b32 s{sHo}, s{sOOB}, s{sHo}\ns_cbranch_scc1 {name}_nogelu")
    ge = Block("gelu")
    p2 = lambda r: f"v[{r}:{r + 1}]"
    for tt in range(4):
        st_ = p2(22 + 2 * tt)
        for m in range(2):
            prs = [(HA(2 * m + i, tt) + r, 4 * (2 * m + i) + r) for i in range(2) for r in (0, 2)]
            T = [68 + 2 * k for k in range(4)]
            for (x, o) in prs:
                ge(f"v_pk_fma_f32 {p2(x)}, {p2(48 + o)}, {st_}, {p2(x)} op_sel_hi:[1,0,1] neg_lo:[0,1,0] neg_hi:[0,1,0]")
            for (x, o) in prs:
                ge(f"v_pk_fma_f32 {p2(x)}, {p2(x)}, {st_}, {p2(32 + o)} op_sel:[0,1,0] op_sel_hi:[1,1,1]")
            for k, (x, o) in enumerate(prs):
                ge(f"v_pk_mul_f32 {p2(T[k])}, {p2(x)}, {p2(x)}")
            for k in range(4):
                ge(f"v_pk_fma_f32 {p2(T[k])}, {p2(T[k])}, v[64:65], v[64:65] op_sel:[0,1,0] op_sel_hi:[1,1,0]")
            for k, (x, o) in enumerate(prs):
                ge(f"v_pk_mul_f32 {p2(T[k])}, {p2(T[k])}, {p2(x)}")
            for k in range(8):
                ge(f"v_exp_f32 v{68 + k}, v{68 + k}")
            for k in range(4):
                ge(f"v_pk_add_f32 {p2(T[k])}, {p2(T[k])}, v[66:67] op_sel_hi:[1,0]")
            for k in range(8):
                ge(f"v_rcp_f32 v{68 + k}, v{68 + k}")
            for k, (x, o) in enumerate(prs):
                ge(f"v_pk_mul_f32 {p2(T[k])}, {p2(T[k])}, {p2(x)}")
            d = HA(2 * m, tt)
            for k in range(4):
                ge(f"v_cvt_pk_bf16_f32 v{d + k}, v{T[k]}, v{T[k] + 1}")
    hs = Block("hstore")
    hs(f"{name}_nogelu:")
    for tt in range(4):
        for m in range(2):
            hs(f"s_add_u32 s{sTmp}, s{sHo}, {[0, 1, 4, 5][tt] * AF_TT + m * 1024}")
            hs(f"buffer_store_dwordx4 {vr(HA(2 * m, tt))}, v{vL16}, {S(sWS)}, s{sTmp} offen{SC}")
    return b, ge, hs


OAF = lambda u, tt: 192 + 8 * (u % 8) + 4 * tt
OWF = lambda f: 128 + 4 * (f % 8)
OACC = lambda nt, tt: 128 + 4 * (nt * 2 + tt)
oslot = lambda d: (0x10000 if (d % 6) < 3 else 0) + (d % 3) * 20480


def out_setup(b):
    t = vT + 2
    b(f"""
    v_and_b32 v{t}, 15, v0
    v_lshrrev_b32 v{t + 1}, 4, v0
    v_lshrrev_b32 v{t + 2}, 1, v{t + 1}
    v_lshlrev_b32 v{t + 2}, 4, v{t + 2}
    v_and_b32 v{t + 3}, 1, v{t + 1}
    v_lshl_add_u32 v{t + 2}, v{t + 3}, 2, v{t + 2}
    v_lshrrev_b32 v{t + 4}, 2, v{t}
    v_add_u32 v{t + 2}, v{t + 2}, v{t + 4}
    v_mul_u32_u24 v{t + 2}, 320, v{t + 2}
    v_and_b32 v{t + 4}, 3, v{t}
    v_lshl_add_u32 v{t + 2}, v{t + 4}, 3, v{t + 2}
    v_add_u32 v{t + 2}, 0x10000, v{t + 2}
    v_lshl_add_u32 v{vOTr}, v{t + 3}, 5, v{t + 2}
    v_xor_b32 v{t + 3}, 1, v{t + 3}
    v_lshl_add_u32 v{vOTr + 1}, v{t + 3}, 5, v{t + 2}
    s_mul_i32 s{sTmp}, s{sW}, 320
    s_mov_b32 s{sTmp2}, 52429
    s_mul_i32 s{sOm}, s{sW}, 5120
    """)
    for i in range(5):
        b(f"""
        v_add_u32 v{t + 2}, s{sTmp}, v0
        v_add_u32 v{t + 2}, {64 * i}, v{t + 2}
        v_mul_lo_u32 v{t + 3}, v{t + 2}, s{sTmp2}
        v_lshrrev_b32 v{t + 3}, 20, v{t + 3}
        v_mul_u32_u24 v{t + 4}, 20, v{t + 3}
        v_sub_u32 v{t + 4}, v{t + 2}, v{t + 4}
        v_bfe_u32 v{t + 5}, v{t + 3}, 2, 1
        v_lshlrev_b32 v{t + 5}, 1, v{t + 5}
        v_xor_b32 v{t + 4}, v{t + 4}, v{t + 5}
        v_mul_u32_u24 v{t + 3}, 1280, v{t + 3}
        v_lshl_add_u32 v{vOD + i}, v{t + 4}, 4, v{t + 3}
        """)
    b(f"""
    s_sub_u32 s{sTmp}, 15, s{sG}
    s_bitcmp1_b32 s{sH}, 2
    s_cselect_b32 s{sTmp}, s{sG}, s{sTmp}
    s_cselect_b32 s{sOfl}, 2, 1
    s_cselect_b32 s{sPo}, 32, 0
    s_lshl_b32 s{sOfl}, s{sOfl}, 7
    s_lshl_b32 s{sTmp}, s{sTmp}, 3
    s_lshl_b32 s{sTmp2}, s{sW}, 1
    s_add_u32 s{sTmp}, s{sTmp}, s{sTmp2}
    s_mul_i32 s{sTmp}, s{sTmp}, {AF_TT}
    v_add_u32 v{vOAt}, s{sTmp}, v{vL16}
    v_add_u32 v{vOAt + 1}, {AF_TT}, v{vOAt}
    s_lshr_b32 s{sTmp}, s{sH}, 3
    s_and_b32 s{sTmp2}, s{sH}, 3
    s_lshl_b32 s{sOA}, s{sTmp}, 15
    s_add_u32 s{sOA}, s{sOA}, {AF_OFF}
    s_mul_i32 s{sTmp3}, s{sTmp2}, 320
    s_mul_i32 s{sOW}, s{sTmp}, {1024 * 1280}
    s_add_u32 s{sOW}, s{sOW}, s{sTmp3}
    s_mul_i32 s{sOA2}, s{sTmp}, 14
    s_min_u32 s{sOA2}, s{sOA2}, 41
    s_mul_i32 s{sOW2}, s{sOA2}, {32 * 1280}
    s_add_u32 s{sOW2}, s{sOW2}, s{sTmp3}
    s_lshl_b32 s{sOA2}, s{sOA2}, 10
    s_add_u32 s{sOA2}, s{sOA2}, {AF_OFF + 128 * 1024}
    s_add_u32 s{sOA13}, s{sOA2}, {13 * 1024}
    s_cmp_lt_u32 s{sTmp}, 2
    s_cselect_b32 s{sOA13}, s{sOA13}, s{sOOB}
    s_and_b32 s{sOkw}, s{sH}, 7
    s_lshl_b32 s{sOkw}, s{sOkw}, 1
    s_lshl_b32 s{sOka}, s{sOkw}, 11
    s_lshl_b32 s{sTmp2}, s{sTmp2}, 3
    s_add_u32 s{sPo}, s{sPo}, s{sTmp2}
    s_add_u32 s{sPo}, s{sPo}, s{sG}
    s_lshl_b32 s{sPo}, s{sPo}, 2
    s_add_u32 s{sPo}, s{sPo}, s{sW}
    s_mul_i32 s{sPo}, s{sPo}, 10240
    s_mul_i32 s{sTmp2}, s{sTmp}, {PF_X}
    s_add_u32 s{sPo}, s{sPo}, s{sTmp2}
    s_add_u32 s{sPo}, s{sPo}, {PF_OFF}
    s_lshl_b32 s{sTmp}, s{sTmp}, 5
    s_add_u32 s{sOfl}, s{sOfl}, s{sTmp}
    s_and_b32 s{sTmp}, s{sFl2}, 0xfffffe00
    s_add_u32 s{sOfl}, s{sOfl}, s{sTmp}
    v_lshlrev_b32 v{vOPo}, 2, v0
    s_lshl_b32 s{sTmp}, s2, 2
    s_add_u32 s{sTmp}, s{sTmp}, s{sW}
    s_sub_u32 s{sTmp2}, s{sTmp}, 640
    s_cmp_lt_u32 s{sTmp}, 910
    s_cselect_b32 s{sP + 2}, 8192, 0
    s_cselect_b32 s{sTmp2}, s{sTmp2}, 0
    s_cmp_lt_u32 s{sTmp}, 640
    s_cselect_b32 s{sP}, s{sWO}, s{sW2}
    s_cselect_b32 s{sP + 1}, s{sWO + 1}, s{sW2 + 1}
    s_cselect_b32 s{sTmp}, s{sTmp}, s{sTmp2}
    s_lshl_b32 s{sTmp}, s{sTmp}, 13
    s_add_u32 s{sP}, s{sP}, s{sTmp}
    s_addc_u32 s{sP + 1}, s{sP + 1}, 0
    s_mov_b32 s{sP + 3}, 0x20000
    s_mov_b32 s{sTo}, 0
    v_min_u32 v{vTch}, 7, v0
    v_lshlrev_b32 v{vTch}, 7, v{vTch}
    """)


def o_dma(d):
    if d < 7:
        pre, sr = f"s_add_u32 s{sTmp}, s{sOW2}, {d * 64 * 1280}", sW2
        post = []
    else:
        pre, sr = f"s_mul_i32 s{sTmp}, s{sOkw}, {64 * 1280}\ns_add_u32 s{sTmp}, s{sTmp}, s{sOW}", sWO
        post = [f"s_add_u32 s{sOkw}, s{sOkw}, 1\ns_and_b32 s{sOkw}, s{sOkw}, 15"]
    L = [pre.replace(f"s{sTmp}", f"s{sKn}")]
    for i in range(5):
        L.append(f"s_add_u32 m0, s{sOm}, {oslot(d) + i * 1024}\ns_nop 0\nbuffer_load_dwordx4 v{vOD + i}, {S(sr)}, s{sKn} offen lds ; W:o{d}")
    return L + post


def o_act(u):
    if u < 13:
        pre = f"s_add_u32 s{sVn}, s{sOA2}, {u * 1024}"
    elif u == 13:
        pre = f"s_mov_b32 s{sVn}, s{sOA13}"
    else:
        pre = f"s_add_u32 s{sVn}, s{sOA}, s{sOka}\ns_add_u32 s{sOka}, s{sOka}, 1024\ns_and_b32 s{sOka}, s{sOka}, 0x7fff"
    return [pre] + [f"buffer_load_dwordx4 {ar(OAF(u, tt))}, v{vOAt + tt}, {S(sWS)}, s{sVn} offen{SC}" for tt in range(2)]


def gen_out(name, wlead=4, alead=6, PF=4):
    NU, ND = 46, 23
    b = Block("out")

    def trrd(u, nt, dst):
        off = ((u // 2) % 3) * 20480 + (u % 2) * 10240 + (nt // 2) * 64
        return [f"ds_read_b64_tr_b16 a[{dst}:{dst + 1}], v{vOTr + nt % 2} offset:{off}",
                f"ds_read_b64_tr_b16 a[{dst + 2}:{dst + 3}], v{vOTr + nt % 2} offset:{off + 8 * 320}"]
    b("s_barrier ; R:o0")
    for f in range(PF):
        for t in trrd(0, f, OWF(f)):
            b(t)
    mains = []
    for u in range(NU):
        for nt in range(10):
            for tt in range(2):
                a = vr(OACC(nt, tt))
                mains.append(f"{MF16} {a}, {ar(OWF(u * 10 + nt))}, {ar(OAF(u, tt))}, {a if u else '0'}")
    sc = Sched(mains, 16)
    sync, rd, lw, la = [], [], [], []
    bgp = 40 - 2 * PF - 2
    for d in range(ND - 1):
        sync.append((d * 40 + bgp, f"s_barrier ; R:o{d + 1}" + (" R:cb" if d == 2 else ""), True))
        if d == 2:
            sync.append((d * 40 + bgp + 1, f"buffer_store_dword v{vOneI}, v{vFl2}, {S(sWS)}, s{sFl2} offen offset:256 sc1", True))
    for i in range(NU * 10 - PF):
        t = i + PF
        u2, f2 = t // 10, t % 10
        r = trrd(u2, f2, OWF(t))
        if u2 % 6 == 0 and f2 < 2 and u2 > 0:
            r[0] = f"v_xor_b32 v{vOTr + f2}, 0x10000, v{vOTr + f2}\n" + r[0]
        rd.append((2 * i, r[0], True))
        rd.append((2 * i + 1, r[1], True))
    for d in range(2, ND):
        g = max(0, d - wlead) * 40 + (2 if d >= wlead else 14 * (d - 2))
        for k, t in enumerate(o_dma(d)):
            lw.append((g + (6 if d >= wlead else 2) * k, t))
    ld, chk = poll_check(name, "cx", 224, vOPo, sWS, f"s{sOfl}", 1, 0xff)
    for u in range(4, NU):
        g = max(0, u - alead) * 20 + 3
        if u == 16:
            la.append((g - 2, ld))
        if u == 18:
            la.append((g - 2, chk, True))
        for k, t in enumerate(o_act(u)):
            la.append((g + 5 * k, t))
    assert (14 - alead) * 20 > 2 * 40 + bgp
    sc.add(sync)
    sc.add(rd)
    sc.add(lw, maxper=1, over=4)
    sc.add(la, maxper=1, over=4)
    ep = []
    g0 = (NU - 1) * 20
    for m in range(5):
        for tt in range(2):
            gap = g0 + (2 * m + 1) * 2 + tt + 6
            x, y = OACC(2 * m, tt), OACC(2 * m + 1, tt)
            ep.append((gap, f"v_cvt_pk_bf16_f32 v{x}, v{x}, v{x + 1}"))
            ep.append((gap, f"v_cvt_pk_bf16_f32 v{x + 1}, v{x + 2}, v{x + 3}"))
            ep.append((gap, f"v_cvt_pk_bf16_f32 v{x + 2}, v{y}, v{y + 1}"))
            ep.append((gap, f"v_cvt_pk_bf16_f32 v{x + 3}, v{y + 2}, v{y + 3}"))
            ep.append((gap, f"s_add_u32 s{sTmp}, s{sPo}, {(tt * 5 + m) * 1024}\nbuffer_store_dwordx4 {vr(x)}, v{vL16}, {S(sWS)}, s{sTmp} offen{SC}"))
    sc.add(ep)
    body = sc.build()
    ins = [i for i in body.ins if i.states]
    for d in range(2, ND):
        w = [k for k, i in enumerate(ins) if ("lds", f"o{d}") in i.w]
        r = [k for k, i in enumerate(ins) if ("lds", f"o{d}") in i.r]
        assert len(w) == 5 and max(w) < r[0], d
        if d >= 6:
            rp = [k for k, i in enumerate(ins) if ("lds", f"o{d - 4}") in i.r]
            assert min(w) > rp[0], d
    nm = 0
    nload = {}
    for i in ins:
        if i.cls == "mfma":
            u = nm // 20
            key = i.srcab[4]
            assert nload.get(key, 0) + (1 if (key[1] - 192) // 8 < 4 else 0) == u // 8 + 1, (u, i.text)
            nm += 1
        elif i.op == "buffer_load_dwordx4" and i.w and i.w[0][0] == "a":
            nload[i.w[0]] = nload.get(i.w[0], 0) + 1
    cnt = 0
    for i in body.ins:
        if i.cls == "mfma":
            if cnt in (280,):
                b("; stamp")
            cnt += 1
        b.ins.append(i)
    b("; stamp")
    return b


def gen_k4(name="k4_kernel"):
    b = Block("k4")
    b(f"""
    s_cmp_ge_u32 s2, 640
    s_cbranch_scc1 {name}_done
    s_load_dwordx2 s[20:21], s[0:1], {KA_WS}
    s_load_dwordx2 s[8:9], s[0:1], {KA_X}
    s_load_dwordx2 s[12:13], s[0:1], {KA_B2}
    s_load_dwordx2 s[16:17], s[0:1], {KA_OUT}
    v_lshrrev_b32 v1, 6, v0
    v_and_b32 v0, 63, v0
    v_readfirstlane_b32 s24, v1
    v_lshlrev_b32 v2, 4, v0
    s_mov_b32 s22, {WS_USED}
    s_mov_b32 s23, 0x20000
    s_mov_b32 s10, {S_ * M * 2}
    s_mov_b32 s11, 0x20000
    s_mov_b32 s14, {M * 2}
    s_mov_b32 s15, 0x20000
    s_mov_b32 s18, {S_ * M * 2}
    s_mov_b32 s19, 0x20000
    s_lshl_b32 s25, s2, 2
    s_add_u32 s25, s25, s24
    s_lshl_b32 s26, s25, 10
    s_add_u32 s26, s26, {PF_OFF}
    s_mul_i32 s27, s25, 52429
    s_lshr_b32 s27, s27, 21
    s_mul_i32 s28, s27, 40
    s_sub_u32 s28, s25, s28
    s_mul_i32 s29, s28, 52429
    s_lshr_b32 s29, s29, 18
    s_mul_i32 s30, s29, 5
    s_sub_u32 s30, s28, s30
    s_and_b32 s31, s27, 7
    s_sub_u32 s32, 15, s31
    s_cmp_lt_u32 s27, 32
    s_cselect_b32 s31, s32, s31
    s_lshl_b32 s31, s31, 3
    s_add_u32 s31, s31, s29
    s_mul_i32 s31, s31, {16 * 1280}
    s_bfe_u32 s32, s27, 0x20003
    s_mul_i32 s32, s32, 320
    s_lshl_b32 s33, s30, 6
    s_add_u32 s32, s32, s33
    s_add_u32 s31, s31, s32
    v_and_b32 v3, 15, v0
    v_lshrrev_b32 v4, 4, v0
    v_lshlrev_b32 v4, 3, v4
    v_mul_u32_u24 v3, 1280, v3
    v_add_u32 v3, v3, v4
    s_waitcnt lgkmcnt(0)
    """)
    for x in range(4):
        b(f"buffer_load_dwordx4 {vr(8 + 4 * x)}, v2, {S(20)}, s26 offen\ns_add_u32 s26, s26, {PF_X}")
    b(f"""
    buffer_load_dwordx2 v[24:25], v3, {S(8)}, s31 offen
    buffer_load_dwordx2 v[26:27], v3, {S(8)}, s31 offen offset:32
    buffer_load_dwordx2 v[28:29], v4, {S(12)}, s32 offen
    buffer_load_dwordx2 v[30:31], v4, {S(12)}, s32 offen offset:32
    """)
    for src_ in range(8, 32, 4):
        for j in range(4):
            lo, hi = 32 + 2 * j, 33 + 2 * j
            if src_ == 8:
                b(f"v_lshlrev_b32 v{lo}, 16, v{src_ + j}\nv_and_b32 v{hi}, 0xffff0000, v{src_ + j}")
            else:
                b(f"v_lshlrev_b32 v40, 16, v{src_ + j}\nv_and_b32 v41, 0xffff0000, v{src_ + j}\nv_add_f32 v{lo}, v{lo}, v40\nv_add_f32 v{hi}, v{hi}, v41")
    for j in range(4):
        b(f"v_cvt_pk_bf16_f32 v{8 + j}, v{32 + 2 * j}, v{33 + 2 * j}")
    b(f"buffer_store_dwordx2 v[8:9], v3, {S(16)}, s31 offen\nbuffer_store_dwordx2 v[10:11], v3, {S(16)}, s31 offen offset:32")
    b(f"{name}_done:\ns_endpgm")
    auto_wait(b)
    fix_hazards(b)
    assert check_trace([b], "k4") == 0
    return kernel_header(name) + "\n" + b.text(), kernel_desc(name, 48, 48, 48), f"; @launch kernel={name} grid=(640,1,1) block=(256,1,1) lds=0"


def gen_ka(name="ka_kernel", stamps=False, **kw):
    SLOW.clear()
    p1, gelu, hs = gen_front(name, **kw)
    def O(db, qt):
        return ("v", 160 + 16 * (db * 2 + qt)) if db < 2 else ("a", 16 * ((db - 2) * 2 + qt))
    Os = lambda db, qt: "%s[%d:%d]" % (O(db, qt)[0], O(db, qt)[1], O(db, qt)[1] + 15)
    Q = lambda qt, s: 64 + 4 * (qt * 8 + s)
    FR = lambda f: 128 + 4 * (f % 16)
    Sb = lambda b, qt: 32 + 32 * b + 16 * qt
    Pb = lambda b, qt, ks: 96 + 16 * b + 8 * qt + 4 * ks
    NM = lambda qt: 128 + 16 * qt
    PAT, ZR, XR = 224, 240, 64
    PF = 6

    rdK = lambda n_par, s, slot: f"ds_read_b128 {ar(FR(slot))}, v{vKa} offset:{n_par * 0x4000 + s * 1024}"

    def rdV(n_par, f, slot, order=None):
        ks, db = order[f] if order else (f // 4, f % 4)
        return f"ds_read_b128 {ar(FR(slot))}, v{vVa0 if db < 2 else vVa1} offset:{n_par * 0x4000 + (db % 2) * 2048 + ks * 1024}"
    togK = f"v_xor_b32 v{vKa}, 0x8000, v{vKa}"
    togV = [f"v_xor_b32 v{vVa0}, {VTOG}, v{vVa0}", f"v_xor_b32 v{vVa1}, {VTOG}, v{vVa1}"]
    EORD = [(0, 2), (0, 3), (1, 2), (1, 3), (0, 0), (0, 1), (1, 0), (1, 1)]

    def softmax_ops(b, qts=(0, 1), pat=None, sub=False):
        elems = [(qt, 8 * c + j) for c in range(2) for qt in qts for j in range(8)]
        L = []

        def pre(i):
            if i < len(elems):
                qt, r = elems[i]
                x = Sb(b, qt) + r
                if sub:
                    L.append(f"v_sub_f32 v{x}, v{x}, v{vM[qt]}")
                if pat == qt:
                    L.append(f"v_add_f32 v{x}, v{x}, v{PAT + r}")
        pre(0)
        for i, (qt, r) in enumerate(elems + [(None, None)]):
            if qt is not None:
                x = Sb(b, qt) + r
                L.append(f"v_exp_f32 v{x}, v{x}")
                pre(i + 1)
            if i >= 1:
                pq, pr = elems[i - 1]
                x = Sb(b, pq) + pr
                L.append(f"v_add_f32 v{vLs[pq]}, v{vLs[pq]}, v{x}")
                if pr % 2 == 1:
                    L.append(f"v_cvt_pk_bf16_f32 v{Pb(b, pq, pr // 8) + (pr % 8) // 2}, v{x - 1}, v{x}")
        return L

    def pv(b, slot0, qts=(0, 1), order=None):
        L = []
        for f in range(8):
            ks, db = order[f] if order else (f // 4, f % 4)
            L.append([f"{MF} {Os(db, qt)}, {ar(FR(slot0 + f))}, {vr(Pb(b, qt, ks))}, {Os(db, qt)}" for qt in qts])
        return L

    def qk(b, slot0, qts=(0, 1), czero=False):
        L = []
        for s in range(8):
            L.append([f"{MF} {vr(Sb(b, qt), 16)}, {ar(FR(slot0 + s))}, {ar(Q(qt, s))}, " +
                      (vr(Sb(b, qt), 16) if s else ("0" if czero else vr(NM(qt), 16))) for qt in qts])
        return L

    def spread(items, first, last):
        n = len(items)
        return [(first + (last - first) * k // max(1, n), t) for k, t in enumerate(items)]

    def step(par, kind):
        groups, rds = [], []
        if kind != "A":
            groups += pv(par ^ 1, 0)
            rds += [[rdV(par ^ 1, f, f)] for f in range(8)]
        if kind != "D":
            groups += qk(par ^ 1, 8, qts=(1,) if kind == "C" else (0, 1))
            rk = [[rdK(par ^ 1, s, 8 + s)] for s in range(8)]
            if par == 1:
                rk[0] = [togK] + rk[0]
            rds += rk
        nxt = [[rdV(par, f, f if kind != "D" else 8 + f, EORD if kind == "D" else None)] for f in range(PF if kind != "D" else 8)]
        if par == 0:
            nxt[0] = togV + nxt[0]
        rds += nxt
        mains, fpos = [], []
        for g in groups:
            fpos.append(len(mains))
            mains += g
        if kind == "A":
            mains += [f"{MF} {Os(db, qt)}, {vr(ZR)}, {vr(ZR)}, 0" for db in range(4) for qt in range(2)]
        n = len(mains)
        sc = Sched(mains, 32)
        sc.add([(0, "s_waitcnt vmcnt(12)\ns_barrier", True)])
        r = []
        for f in range(len(groups)):
            for t in rds[f + PF] if f + PF < len(rds) else []:
                r.append((fpos[f], t, True))
        for k, f in enumerate(range(len(groups) + PF, len(rds))):
            for t in rds[f]:
                r.append((n - 1, t, True))
        sc.add(r)
        d = dma_V(par) + (dma_K(par) if kind != "D" else [])
        if kind == "B" and par == 1:
            d = [f"buffer_load_dword v255, v{vTch}, {S(sP)}, s{sTo} offen", f"s_add_u32 s{sTo}, s{sTo}, 1024"] + d
        sc.add(spread(d, 1, n - 1), maxper=1)
        if kind == "D":
            sc.add([(1, f"s_lshl_b32 s{sTmp}, s{sQh}, 14\ns_add_u32 s{sTmp}, s{sTmp}, {SCR}\nv_add_u32 v{vT}, s{sTmp}, v{vL16}")] +
                   spread([f"ds_read_b128 {ar(64 + 4 * f)}, v{vT} offset:{f * 1024}" for f in range(16)], 2, 12), maxper=2)
        sm = softmax_ops(par, qts=(1,) if kind == "D" else (0, 1), pat={"C": 0, "D": 1}.get(kind), sub=(kind == "A"))
        first = 0 if kind == "A" else 2
        cap = None
        sc.add(spread(sm, first, n - (2 if kind == "D" else 0)))
        if kind == "D":
            sc.add([(n - 1, f"v_mov_b32 v{vT + 1}, v{vLs[0]}\nv_mov_b32 v{vT + 2}, v{vLs[1]}\n"
                            f"v_and_b32 v{vT + 3}, 0x18000, v{vKa}\nv_lshl_add_u32 v{vT + 3}, v0, 3, v{vT + 3}\nv_add_u32 v{vT + 3}, s{sM0}, v{vT + 3}\n"
                            f"v_permlane32_swap_b32 v{vT + 1}, v{vLs[0]}\nv_permlane32_swap_b32 v{vT + 2}, v{vLs[1]}\n"
                            f"v_add_f32 v{vLs[0]}, v{vLs[0]}, v{vT + 1}\nv_add_f32 v{vLs[1]}, v{vLs[1]}, v{vT + 2}\n"
                            f"ds_write_b64 v{vT + 3}, v[{vM[0]}:{vLs[0]}] offset:0x4000\nds_write_b64 v{vT + 3}, v[{vM[1]}:{vLs[1]}] offset:0x4200\n"
                            f"v_xor_b32 v{vT + 3}, 0x800, v{vT + 3}")])
        return sc.build()

    def maxpart(b):
        b(f"s_cmp_lg_u32 s{sTh}, 1\ns_cbranch_scc1 {b.name}_nopat")
        for r in range(16):
            b(f"v_add_f32 v{Sb(0, 0) + r}, v{Sb(0, 0) + r}, v{PAT + r}")
        b(f"{b.name}_nopat:")
        for j in range(0, 16, 4):
            for qt in range(2):
                s0, m, t = Sb(0, qt), vM[qt], vT + qt
                if j == 0:
                    b(f"v_max_f32 v{m}, v{s0}, v{s0 + 1}\nv_max_f32 v{t}, v{s0 + 2}, v{s0 + 3}")
                else:
                    b(f"v_max3_f32 v{m}, v{m}, v{s0 + j}, v{s0 + j + 1}\nv_max3_f32 v{t}, v{t}, v{s0 + j + 2}, v{s0 + j + 3}")
        for qt in range(2):
            b(f"v_max3_f32 v{vM[qt]}, v{vM[qt]}, v{vT + qt}, v{ZR + 4}")
        for qt in range(2):
            b(f"v_mov_b32 v{vT + qt}, v{vM[qt]}\nv_mov_b32 v{vLs[qt]}, 0")
        for qt in range(2):
            b(f"v_permlane32_swap_b32 v{vT + qt}, v{vM[qt]}")
        for qt in range(2):
            b(f"v_max_f32 v{vM[qt]}, v{vM[qt]}, v{vT + qt}")
        for qt in range(2):
            b(f"v_sub_f32 v{NM(qt)}, 0, v{vM[qt]}\nv_sub_f32 v{NM(qt) + 1}, 0, v{vM[qt]}")
        for r in range(2, 16, 2):
            for qt in range(2):
                b(f"v_pk_mov_b32 v[{NM(qt) + r}:{NM(qt) + r + 1}], v[{NM(qt)}:{NM(qt) + 1}], v[{NM(qt)}:{NM(qt) + 1}]")

    pro = Block(name + "_pro")
    pro("; stamp")
    pro(f"""
    v_and_b32 v{vT}, 31, v0
    v_lshrrev_b32 v{vT + 1}, 5, v0
    v_lshlrev_b32 v{vT + 1}, 2, v{vT + 1}
    v_sub_u32 v{vT}, v{vT}, v{vT + 1}
    s_sub_u32 s{sTmp}, s{sQh}, s{sKh}
    s_lshl_b32 s{sTmp}, s{sTmp}, 5
    v_add_u32 v{vT}, s{sTmp}, v{vT}
    v_mov_b32 v{vT + 1}, 0xff800000
    v_mov_b32 v{ZR}, 0
    v_mov_b32 v{ZR + 1}, 0
    v_mov_b32 v{ZR + 2}, 0
    v_mov_b32 v{ZR + 3}, 0
    v_mov_b32 v{ZR + 4}, 0xf149f2ca
    v_mov_b32 v{vOneI}, 1
    """)
    out_setup(pro)
    pro(f"""
    s_waitcnt vmcnt(20)
    s_barrier
    {togK}
    """)
    for s in range(8):
        pro(rdK(0, s, s))
    for r in range(16):
        pro(f"v_cmp_gt_i32 vcc, {8 * (r // 4) + r % 4}, v{vT}\nv_cndmask_b32 v{PAT + r}, 0, v{vT + 1}, vcc")
    sc = Sched([m for g in qk(0, 0, czero=True) for m in g], 32)
    sc.add([(2 * s + 1, rdK(1, s, 8 + s), True) for s in range(PF)])
    sc.add(spread(dma_K(1), 0, 15), maxper=1)
    pro.extend(sc.build())
    maxpart(pro)

    A0 = Block("A0")
    A0(f"{name}_A:")
    A0.extend(step(0, "A"))
    A0(f"s_sub_u32 s{sCnt}, s{sTh}, 2\ns_cbranch_scc1 {name}_D")
    B1 = Block("B1")
    B1(f".p2align 6\n{name}_loop:")
    B1.extend(step(1, "B"))
    B1(f"s_sub_u32 s{sCnt}, s{sCnt}, 1\ns_cbranch_scc1 {name}_C")
    B0 = step(0, "B")
    B0(f"s_branch {name}_loop")
    C0 = Block("C0")
    C0(f"{name}_C:")
    C0.extend(step(0, "C"))
    D1 = Block("D1")
    D1(f"{name}_D:")
    D1.extend(step(1, "D"))
    D1(f"s_cmp_lg_u32 s{sBlk}, 0\ns_cbranch_scc1 {name}_El")

    def gen_E(last):
        E = Block(name + ("_El" if last else "_En"))
        if last:
            E(f"{name}_El:")
        mains = [m for g in pv(1, 8, qts=(1,), order=EORD) for m in g]
        if not last:
            mains += [m for g in qk(0, 0, czero=True) for m in g]
        n = len(mains)
        sc = Sched(mains, 32)
        sc.pre = [f"s_waitcnt vmcnt({0 if last else 12}) lgkmcnt(0)\ns_barrier",
                  f"ds_read_b64 v[{vT + 4}:{vT + 5}], v{vT + 3} offset:0x4000\nds_read_b64 v[{vT + 6}:{vT + 7}], v{vT + 3} offset:0x4200",
                  f"buffer_store_dword v{vOneI}, v{vFl2}, {S(sWS)}, s{sFl2} offen offset:{128 if last else 0} sc1"]
        if last:
            hld, hchk = poll_check(name, "h", 224, vOPo, sWS, f"s{sTo}", 1, -1)
            sc.pre.append(f"s_and_b32 s{sTo}, s{sFl2}, 0xfffffe00\n" + hld)
        if not last:
            sc.add([(0, togK, True)] + [(1 + s // 2, rdK(0, s, s), True) for s in range(8)])
        vRw, vRp = vT + 8, vT + 9
        sc.add([(0, f"v_and_b32 v{vT}, {VTOG}, v{vVa0}"), (0, f"v_mov_b32 v{vT + 1}, {SCR}"),
                (0, f"s_lshl_b32 s{sTmp}, s{sQh}, 14"), (0, f"v_add_u32 v{vT + 2}, s{sTmp}, v{vL16}"),
                (0, f"s_cmp_eq_u32 s{sKh}, 0\ns_cselect_b64 vcc, -1, 0"),
                (1, f"v_cndmask_b32 v{vRw}, v{vT}, v{vT + 1}, vcc"), (1, f"v_cndmask_b32 v{vRp}, v{vT + 1}, v{vT}, vcc"),
                (1, f"v_add_u32 v{vRw}, v{vRw}, v{vT + 2}"), (1, f"v_add_u32 v{vRp}, v{vRp}, v{vT + 2}")])
        wr = []
        for db in range(2):
            for j in range(4):
                wr.append((2, f"ds_write_b128 v{vRw}, {ar(32 * db + 4 * j)} offset:{(8 * db + j) * 1024}"))
        for db in range(2):
            for j in range(4):
                wr.append((6, f"ds_write_b128 v{vRw}, {ar(32 * db + 16 + 4 * j)} offset:{(8 * db + 4 + j) * 1024}"))
        gb = min(n - 1, 11)
        wr.append((gb, "s_waitcnt lgkmcnt(0)\ns_barrier", True))
        for i in range(16):
            wr.append((gb, f"ds_read_b128 {vr(XR + 4 * i)}, v{vRp} offset:{i * 1024}"))
        if not last:
            for s in range(PF):
                wr.append((gb, rdK(1, s, 8 + s)))
        sc.add(wr, maxper=3)
        fac = []
        for qt in range(2):
            m2, l2, t = vT + 4 + 2 * qt, vT + 5 + 2 * qt, vT + 10 + qt
            fac += [f"v_max_f32 v{t}, v{vM[qt]}, v{m2}", f"v_sub_f32 v{vF[qt]}, v{vM[qt]}, v{t}", f"v_sub_f32 v{vF[qt] + 1}, v{m2}, v{t}",
                    f"v_exp_f32 v{vF[qt]}, v{vF[qt]}", f"v_exp_f32 v{vF[qt] + 1}, v{vF[qt] + 1}",
                    f"v_mul_f32 v{t}, v{vLs[qt]}, v{vF[qt]}", f"v_fma_f32 v{t}, v{l2}, v{vF[qt] + 1}, v{t}", f"v_rcp_f32 v{t}, v{t}",
                    f"v_mul_f32 v{vF[qt]}, v{vF[qt]}, v{t}", f"v_mul_f32 v{vF[qt] + 1}, v{vF[qt] + 1}, v{t}"]
        own = []
        for qt in range(2):
            for db in range(2):
                for r in range(16):
                    x = O(db, qt)[1] + r
                    own.append((3 if qt == 0 else min(n - 1, 10), f"v_mul_f32 v{x}, v{vF[qt]}, v{x}"))
        sc.add([(2, t) for t in fac] + own)
        if not last:
            sc.add(spread(dma_K(1), gb + 1, n - 1), maxper=1)
        E.extend(sc.build())
        xtra = []
        if last:
            E(hchk)
            xtra = o_dma(0) + o_act(0) + o_act(1) + o_dma(1) + o_act(2) + o_act(3)
            for t in xtra[:9]:
                E(t)
            xtra = xtra[9:]
        for db in range(2):
            for qt in range(2):
                for c in range(2):
                    for t in xtra[:3]:
                        E(t)
                    xtra = xtra[3:]
                    x0 = O(db, qt)[1] + 8 * c
                    y0 = XR + 16 * (db * 2 + qt) + 8 * c
                    for r in range(0, 8, 2):
                        E(f"v_pk_fma_f32 v[{x0 + r}:{x0 + r + 1}], v[{y0 + r}:{y0 + r + 1}], v[{vF[qt]}:{vF[qt] + 1}], v[{x0 + r}:{x0 + r + 1}] op_sel:[0,1,0] op_sel_hi:[1,1,1]")
                    for r in range(0, 8, 2):
                        E(f"v_cvt_pk_bf16_f32 v{y0 + r // 2}, v{x0 + r}, v{x0 + r + 1}")
                    E(f"s_add_u32 s{sTmp}, s{sCb}, {qt * 4 * AF_TT}")
                    E(f"buffer_store_dwordx4 {vr(y0)}, v{vCo}, {S(sWS)}, s{sTmp} offen offset:{db * 1024 + c * 512}{SC} ; W:cb")
        if last:
            E("; stamp")
            E.extend(gen_out(name))
            E(f"{name}_done:\ns_endpgm")
        else:
            E(f"s_mov_b32 s{sTh}, s{sT2h}\ns_mov_b32 s{sCb}, s{sCb2}\ns_mov_b32 s{sBlk}, 1")
            maxpart(E)
            E(f"s_branch {name}_A")
        return E
    En, El = gen_E(False), gen_E(True)

    pend = lambda s0, n=PF: [set(("a", FR(s0 + f) + j) for j in range(4)) for f in range(n)]
    lg, vm = auto_wait(p1)
    auto_wait(gelu, lg_in=lg, vm_in=vm)
    auto_wait(hs)
    auto_wait(pro, lg_in=lg)
    auto_wait(A0, lg_in=pend(8))
    for b in (B1, B0, C0, D1):
        auto_wait(b, lg_in=pend(0))
    auto_wait(En)
    auto_wait(El)
    fix_hazards(p1)
    fix_hazards(gelu, [p1])
    fix_hazards(hs, [p1, gelu])
    fix_hazards(pro, [hs])
    for _ in range(2):
        fix_hazards(A0, [pro, En])
        fix_hazards(B1, [A0, B0])
        fix_hazards(B0, [B1])
        fix_hazards(C0, [B1])
        fix_hazards(D1, [A0, C0])
        fix_hazards(En, [D1])
        fix_hazards(El, [D1])
    errs = check_trace([p1, gelu, hs, pro, A0, B1, B0, B1, C0, D1, En, A0, D1, El], "k2a")
    errs += check_trace([p1, hs, pro, A0, B1, C0, D1, En, A0, B1, B0, B1, C0, D1, El], "k2b")
    assert errs == 0
    if kw.get("fine"):
        first = True
        for blk in (p1, gelu, hs, pro, En, El):
            out = []
            for i in blk.ins:
                t = i.text.strip()
                if t == "; stamp" and not first:
                    continue
                if t == "; stamp":
                    first = False
                out.append(Ins("; stamp") if t == "; stampF" else i)
            blk.ins = out
    blocks = [p1, gelu, hs, pro, A0, B1, B0, C0, D1, En, El]
    apply_stamps(blocks, name, sW, stamps, stride=8, dbgoff=1024)
    text = kernel_header(name) + "\n" + "\n".join(b.text() for b in blocks) + "\n" + "\n".join(SLOW)
    return text, kernel_desc(name, 512, 256), f"; @launch kernel={name} grid=(256,1,1) block=(256,1,1) lds=163840"


if __name__ == "__main__":
    from gen_attn import write_file
    write_file("mega.s", [gen_ka(), gen_k4()])
    write_file("full3_st.s", [gen_ka(stamps=True), gen_k4()])
    fk = [2, 4, 6, 8, 10, 12, 14, 16, 18, 20]
    write_file("e1_full3_st.s", [gen_ka(stamps=True, fine=fk), gen_k4()])
    write_file("e2_full3_st.s", [gen_ka(stamps=True, fine=fk, touch1=None), gen_k4()])
    write_file("e3_full3_st.s", [gen_ka(stamps=True, fine=fk, touch1=None, lnmode=3), gen_k4()])
    fp = [16, 18, 20, 22, 24, 26, 28, 30, 32, 34]
    write_file("e4_full3_st.s", [gen_ka(stamps=True, fine=fp), gen_k4()])
    write_file("e5_full3_st.s", [gen_ka(stamps=True, fine=fp, nostore=True), gen_k4()])
```
